```python
import torch

def _softmax(x, axis=-1):
    return torch.softmax(x, dim=axis)
def _gelu(x):
    return torch.nn.functional.gelu(x, approximate="tanh")
def _silu(x):
    return torch.nn.functional.silu(x)
def _sigmoid(x):
    return torch.sigmoid(x)
def _layernorm(x, axis=-1, eps=1e-5):
    m = x.mean(dim=axis, keepdim=True)
    v = x.var(dim=axis, keepdim=True, unbiased=False)
    return (x - m) / torch.sqrt(v + eps)
def _scatter_add(tgt, idx, src, axis=0):
    return tgt.clone().index_add_(axis, idx, src)
def _segment_sum(src, seg, n):
    out = torch.zeros((n,) + src.shape[1:], dtype=src.dtype)
    return out.index_add_(0, seg, src)
def _pad(x, pw):
    flat = tuple(v for pair in reversed(pw) for v in pair)
    return torch.nn.functional.pad(x, flat)

kernel_name = 'parallel_sum__mha_block_cached__geglu_ffn__decode'

def setup_inputs():

    _w = (lambda a: (lambda t: t.to(torch.bfloat16) if t.is_floating_point() else t)(torch.as_tensor(a)))
    def _A_setup():
        B, Sq, D = 1, 1, 448
        H, Sk, Dh = 16, 32768, 256
        return {
            "x": _w((lambda *s: torch.randn(*s, dtype=torch.bfloat16) * 0.05)(B, Sq, D)),
            "k_cache": _w((lambda *s: torch.randn(*s, dtype=torch.bfloat16) * 3.2)(B, H, Sk, Dh)),
            "v_cache": _w((lambda *s: torch.randn(*s, dtype=torch.bfloat16) * 1.6)(B, H, Sk, Dh)),
            "wq": _w((lambda *s: torch.randn(*s, dtype=torch.bfloat16) * 3.2)(D, H * Dh) * (D ** -0.5)),
            "wo": _w((lambda *s: torch.randn(*s, dtype=torch.bfloat16) * 1.6)(H * Dh, D) * ((H * Dh) ** -0.5)),
        }
    _A_in = _A_setup()

    def _B_setup():
        B, S, D, F = 1, 1, 448, 1792
        return {
            "x": _w((lambda *s: torch.randn(*s, dtype=torch.bfloat16) * 0.05)(B, S, D)),
            "w_gate": _w((lambda *s: torch.randn(*s, dtype=torch.bfloat16) * 0.05)(D, F)),
            "w_up": _w((lambda *s: torch.randn(*s, dtype=torch.bfloat16) * 0.05)(D, F)),
            "w_down": _w((lambda *s: torch.randn(*s, dtype=torch.bfloat16) * 0.05)(F, D)),
        }
    _B_in = _B_setup()

    return {
        "A_x": _A_in["x"],
        "A_k_cache": _A_in["k_cache"],
        "A_v_cache": _A_in["v_cache"],
        "A_wq": _A_in["wq"],
        "A_wo": _A_in["wo"],
        "B_x": _B_in["x"],
        "B_w_gate": _B_in["w_gate"],
        "B_w_up": _B_in["w_up"],
        "B_w_down": _B_in["w_down"],
    }

def reference(A_x, A_k_cache, A_v_cache, A_wq, A_wo, B_x, B_w_gate, B_w_up, B_w_down):
    def _A_ref(x, k_cache, v_cache, wq, wo):
        B, Sq, D = x.shape
        H, Dh = 16, 256
        q = (lambda x, *d: x.permute(*d))((x @ wq).reshape(B, Sq, H, Dh), 0, 2, 1, 3)
        scores = torch.einsum("bhqd,bhkd->bhqk", q, k_cache) * (Dh ** -0.5)
        p = _softmax(scores, axis=-1)
        o = torch.einsum("bhqk,bhkd->bhqd", p, v_cache)
        return (lambda x, *d: x.permute(*d))(o, 0, 2, 1, 3).reshape(B, Sq, H * Dh) @ wo

    def _B_ref(x, w_gate, w_up, w_down):
        return (_gelu(x @ w_gate) * (x @ w_up)) @ w_down

    x = A_x
    xn = _layernorm(x, axis=-1)
    return x + _A_ref(xn, A_k_cache, A_v_cache, A_wq, A_wo) + _B_ref(xn, B_w_gate, B_w_up, B_w_down)
```

```python
import re
TRANS = ('v_exp_f32','v_log_f32','v_rcp_f32','v_rsq_f32','v_sqrt_f32','v_sin_f32','v_cos_f32')
def regs(tok):
    tok=tok.strip()
    tok=tok.lstrip('-')
    m=re.fullmatch(r'\|?(v|s|a)(\d+)\|?',tok)
    if m: return [(m.group(1),int(m.group(2)))]
    m=re.fullmatch(r'(v|s|a)\[(\d+):(\d+)\]',tok)
    if m: return [(m.group(1),i) for i in range(int(m.group(2)),int(m.group(3))+1)]
    if tok=='vcc': return [('s','vcc')]
    if tok=='exec': return [('s','exec')]
    if tok=='m0': return [('s','m0')]
    return []
class Ins:
    def __init__(s,text):
        s.text=text
        t=text.split(';')[0].strip()
        s.label=t.endswith(':')
        s.dir=t.startswith('.') or t==''
        s.op=t.split()[0] if t else ''
        rest=t[len(s.op):].strip()
        ops=[o.strip() for o in re.split(r',(?![^\[]*\])',rest)] if rest else []
        if ops:
            ops[-1]=ops[-1].split()[0] if ops[-1] else ops[-1]
        s.ops=ops
        op=s.op
        s.mfma=op.startswith('v_mfma')
        s.valu=op.startswith('v_') and not s.mfma
        s.dpp='_dpp' in op or 'quad_perm' in t or 'row_' in t
        s.perml=op.startswith('v_permlane')
        s.trans=any(op.startswith(x) for x in TRANS)
        s.vmem=op.startswith('buffer_') or op.startswith('global_')
        s.ds=op.startswith('ds_')
        s.branch=op.startswith('s_cbranch') or op=='s_branch' or op=='s_endpgm'
        s.rdlane=op.startswith('v_readlane') or op.startswith('v_readfirstlane')
        s.w=[];s.r=[]
        R=[regs(o) for o in ops]
        flat=lambda l:[x for y in l for x in y]
        if s.mfma:
            s.w=R[0]; s.ra=R[1]+R[2]; s.rc=R[3]; s.r=s.ra+s.rc
        elif s.valu:
            if s.perml: s.w=R[0]+R[1]; s.r=R[0]+R[1]
            elif op.startswith('v_cmp'): s.w=R[0]; s.r=flat(R[1:])
            elif op.startswith(('v_add_co','v_addc_co','v_sub_co')): s.w=R[0]+R[1]; s.r=flat(R[2:])
            else:
                s.w=R[0]; s.r=flat(R[1:])
                if op.startswith(('v_fmac','v_dot2c')) or s.dpp: s.r=s.r+R[0]
                if op.startswith('v_cndmask') and len(ops)==3: s.r=s.r+[('s','vcc')]
            s.dppsrc=R[1] if s.dpp else []
        elif s.vmem:
            if 'load' in op and ' lds' not in t: s.w=R[0]; s.r=flat(R[1:])
            elif 'atomic' in op and 'sc0' in t and op.startswith('buffer'): s.w=R[0]; s.r=flat(R)
            elif 'atomic' in op and 'sc0' in t: s.w=R[0]; s.r=flat(R[1:])
            else: s.r=flat(R)
            s.widestore=('store' in op) and (op.endswith('x4') or op.endswith('x3'))
            s.sdata=R[0] if op.startswith('buffer') else (R[1] if len(R)>1 else [])
        elif s.ds:
            if 'read' in op or 'rtn' in op or 'permute' in op: s.w=R[0]; s.r=flat(R[1:])
            else: s.r=flat(R)
        elif op.startswith('s_') and ops:
            if op.startswith(('s_cmp','s_waitcnt','s_nop','s_sleep','s_setprio','s_cbranch','s_branch')): s.r=flat(R)
            else: s.w=R[0]; s.r=flat(R[1:])
        s.states = (int(ops[0])+1) if op=='s_nop' else (0 if (s.label or s.dir) else 1)
def need(p,c):
    n=0
    pw=set(p.w);
    if p.valu:
        vw={x for x in pw if x[0] in 'va'}; sw={x for x in pw if x[0]=='s'}
        if c.valu and c.dpp and vw&set(c.r): n=max(n,2)
        if c.valu and c.perml and vw&set(c.r): n=max(n,2)
        if c.valu and c.rdlane and vw&set(c.r): n=max(n,1)
        if p.trans and (c.valu or c.mfma or c.vmem or c.ds) and vw&set(c.r): n=max(n,1)
        if c.mfma and vw&set(c.r): n=max(n,2)
        if p.op.startswith('v_dot'):
            if c.op==p.op:
                if vw&set(c.r[:-1] if c.r and c.r[-1] in vw else c.r) and not (len(c.r)>0 and c.r[-1] in vw and not vw&set(c.r[:-1])): n=max(n,3)
            elif vw&(set(c.r)|set(c.w)): n=max(n,3)
        if sw:
            if c.valu and sw&set(c.r): n=max(n,4 if c.rdlane else 2)
            if c.vmem and sw&set(c.r): n=max(n,5)
            if c.op.startswith('s_') and sw&set(c.r): n=max(n,1)
            if c.op in('s_cbranch_vccz','s_cbranch_vccnz') and ('s','vcc') in sw: n=max(n,1)
    if p.mfma:
        if c.mfma:
            if pw&set(c.ra): n=max(n,8)
            elif pw&set(c.rc) and list(p.w)!=list(c.rc): n=max(n,6)
            elif pw&set(c.w) and list(p.w)!=list(c.rc): n=max(n,8)
        elif (c.valu or c.vmem or c.ds) and pw&(set(c.r)|set(c.w)): n=max(n,8)
        if c.valu and set(p.rc)&set(c.w): n=max(n,3)
    if p.vmem and getattr(p,'widestore',False):
        if (c.valu or c.mfma or c.vmem or c.ds) and set(p.sdata)&set(c.w): n=max(n,2)
    if p.op.startswith('s_') and ('s','m0') in pw and (c.vmem): n=max(n,1)
    return n
def maxneed(p):
    if p.mfma: return 8
    if p.valu:
        if any(x[0]=='s' and x[1]!='vcc' for x in p.w): return 5
        if p.op.startswith('v_dot'): return 3
        return 2
    if p.vmem and getattr(p,'widestore',False): return 2
    return 0
def pad(lines):
    out=[]; hist=[]
    def emit(i):
        out.append(i.text)
        for h in hist: h[1]+=i.states
        if not(i.label or i.dir): hist.append([i,0])
        while hist and hist[0][1]>=10: hist.pop(0)
    for t in lines:
        for sub in t.split('\n'):
            i=Ins(sub)
            if i.dir: out.append(sub); continue
            k=0
            if i.branch and i.op!='s_endpgm':
                for p,d in hist: k=max(k,maxneed(p)-d-1)
            if not i.label:
                for p,d in hist: k=max(k,need(p,i)-d)
            if k>0: emit(Ins(f"s_nop {k-1}"))
            emit(i)
    return out
```

```python
import struct, sys, math
from asmlib import pad
NAME='parallel_sum__mha_block_cached__geglu_ffn__decode'
def f2h(x): return '0x%08x'%struct.unpack('<I',struct.pack('<f',x))[0]
C_SC=f2h(math.log2(math.e)/16)
QBUF=0x0; INB1=0x10000; INB2=0x100000; INB2F=0x180000; TICK=0x1C0000; WSN=0x200000
RB=16384
SPIN=1<<17

def gen(S=64, NT='nt', WNT='', stamps=False, LA=1, latewo=False, extras=4, header=True):
    L=[]; A=L.append
    DYN = S<64
    POOL=(64-S)*16
    st=[0]
    def stamp(k):
        if stamps: A(f"s_memrealtime s[{64+2*k}:{65+2*k}]")
    def srd(b,p,n):
        A(f"s_mov_b32 s{b}, s{p}"); A(f"s_mov_b32 s{b+1}, s{p+1}"); A(f"s_mov_b32 s{b+2}, {n}"); A(f"s_mov_b32 s{b+3}, 0x00020000")
    def write_stamps():
        if not stamps: return
        A("s_waitcnt lgkmcnt(0)")
        A("s_mov_b32 s80, s26"); A("s_mov_b32 s81, s27"); A("s_mov_b32 s82, 0x40000000"); A("s_mov_b32 s83, 0x00020000")
        A("s_mul_i32 s84, s2, 5"); A("s_add_u32 s84, s84, s3"); A("s_lshl_b32 s84, s84, 6"); A("s_add_u32 s84, s84, 0x20000000")
        A("s_mov_b64 exec, 1"); A("v_mov_b32 v1, 0")
        for k in range(4):
            for i in range(4): A(f"v_mov_b32 v{4+i}, s{64+4*k+i}")
            A(f"buffer_store_dwordx4 v[4:7], v1, s[80:83], s84 offen offset:{16*k}")
            A("s_nop 1")
        A("s_waitcnt vmcnt(0)")
    def masks(b, tmp):
        A(f"v_and_b32 v{tmp}, 1, v0"); A(f"v_cmp_eq_u32 vcc, 1, v{tmp}")
        A(f"v_mov_b32 v{tmp}, 0xffff"); A(f"v_mov_b32 v{tmp+1}, 0xffff0000")
        A(f"v_cndmask_b32 v{tmp}, v{tmp}, v{tmp+1}, vcc")
        A(f"v_bfe_u32 v{tmp+1}, v0, 1, 2")
        for t in range(4):
            A(f"v_cmp_eq_u32 vcc, {t}, v{tmp+1}")
            A(f"v_cndmask_b32 v{b+t}, 0, v{tmp}, vcc")
    def dpp(op,d,a,b,ctl): A(f"{op}_dpp v{d}, v{a}, v{b} {ctl} row_mask:0xf bank_mask:0xf")
    def xrow(op,r,t):
        A(f"v_mov_b32 v{t}, v{r}"); A(f"v_permlane16_swap_b32 v{r}, v{t}"); A(f"{op} v{r}, v{r}, v{t}")
        A(f"v_mov_b32 v{t}, v{r}"); A(f"v_permlane32_swap_b32 v{r}, v{t}"); A(f"{op} v{r}, v{r}, v{t}")
    def merge4(a,b,c,d):
        A(f"v_permlane32_swap_b32 v{a}, v{c}"); A(f"v_permlane32_swap_b32 v{b}, v{d}")
        A(f"v_add_f32 v{a}, v{a}, v{c}"); A(f"v_add_f32 v{b}, v{b}, v{d}")
        A(f"v_permlane16_swap_b32 v{a}, v{b}"); A(f"v_add_f32 v{a}, v{a}, v{b}")

    if header:
        A("; decode block: x + attention(LN(x)) @ wo + GEGLU-FFN(LN(x)); one workgroup per CU, 4 streaming waves + 1 helper wave")
        A("; @launch grid=(256,1,1) block=(320,1,1) lds=8192")
    A('.amdgcn_target "amdgcn-amd-amdhsa--gfx950"')
    A(".text"); A(f".globl {NAME}_kernel"); A(".p2align 8"); A(f".type {NAME}_kernel,@function"); A(f"{NAME}_kernel:")
    if stamps:
        for k in range(1,8): A(f"s_mov_b64 s[{64+2*k}:{65+2*k}], 0")
    stamp(0)
    A("s_cmp_ge_u32 s2, 256"); A("s_cbranch_scc1 L_end")
    A("s_load_dwordx16 s[4:19], s[0:1], 0")
    A("s_load_dwordx8 s[20:27], s[0:1], 64")
    A("v_lshrrev_b32 v1, 6, v0"); A("v_and_b32 v0, 63, v0"); A("v_readfirstlane_b32 s3, v1")
    A("s_lshr_b32 s60, s2, 4"); A("s_and_b32 s61, s2, 15")
    A(f"s_mov_b32 s40, {C_SC}")
    A("s_cmp_eq_u32 s3, 4"); A("s_cbranch_scc1 L_helper")

    vK,vV,vT=1,2,3; M=4; SEL=8; vm=9; vl=10; D=12; AC0=16; AC1=20; B0=24; B1=28; Q=32
    s0,s1,t0,t1,t2=48,49,50,51,52
    RING=[56,88]; EXT=[120+32*i for i in range(extras)]
    A("v_and_b32 v1, 7, v0"); A("v_lshlrev_b32 v1, 9, v1")
    A("v_bfe_u32 v2, v0, 3, 1"); A("v_lshl_add_u32 v1, v2, 6, v1")
    A("v_lshrrev_b32 v3, 4, v0"); A("v_lshl_add_u32 v1, v3, 4, v1")
    A("v_bfe_u32 v2, v0, 4, 1"); A("v_lshlrev_b32 v2, 11, v2")
    A("v_lshrrev_b32 v3, 5, v0"); A("v_lshl_add_u32 v2, v3, 9, v2")
    A("v_and_b32 v3, 15, v0"); A("v_lshl_add_u32 v2, v3, 4, v2")
    A("s_lshl_b32 s41, s60, 24"); A("s_lshl_b32 s43, s3, 12"); A("s_add_u32 s41, s41, s43")
    A(f"s_mul_i32 s36, s61, {S*RB}"); A("s_add_u32 s36, s36, s41")
    A(f"s_add_u32 s41, s41, {16*S*RB}")
    A("s_waitcnt lgkmcnt(0)")
    srd(28,6,'0x10000000'); srd(32,8,'0x10000000')
    def kloads(b):
        for t in range(4): A(f"buffer_load_dwordx4 v[{b+4*t}:{b+4*t+3}], v{vK}, s[28:31], s36 offen offset:{128*t} {NT}")
    def vloads(b):
        for u in range(4): A(f"buffer_load_dwordx4 v[{b+16+4*u}:{b+16+4*u+3}], v{vV}, s[32:35], s36 offen offset:{(u>>1)*1024+(u&1)*256} {NT}")
    for n,b in enumerate(RING+EXT):
        if n>=2: A("s_waitcnt vmcnt(12)")
        kloads(b)
        if n==1:
            masks(M,t0)
            A(f"v_and_b32 v{t0}, 8, v0"); A(f"v_cmp_eq_u32 vcc, 8, v{t0}"); A(f"v_cndmask_b32 v{SEL}, 0, 1.0, vcc")
            A(f"v_mov_b32 v{vm}, 0xff7fffff"); A(f"v_mov_b32 v{vl}, 0")
            for r in range(8): A(f"v_mov_b32 v{AC0+r}, 0")
            A(f"v_and_b32 v{vT}, 1, v0"); A(f"v_lshlrev_b32 v{vT}, 6, v{vT}")
            A(f"v_lshrrev_b32 v{t0}, 4, v0"); A(f"v_lshl_add_u32 v{vT}, v{t0}, 4, v{vT}")
        if n>=2: A("s_waitcnt vmcnt(12)")
        vloads(b)
        A(f"s_add_u32 s36, s36, {RB}")
    A(f"s_mov_b32 s37, {2+extras}"); A("s_mov_b32 s38, 1"); A("s_mov_b32 s39, 1"); A("s_mov_b32 s42, 1")
    stamp(1)
    A("s_barrier")
    for t in range(4): A(f"ds_read_b128 v[{Q+4*t}:{Q+4*t+3}], v{vT} offset:{128*t}")
    A(f"v_mov_b32 v{vT}, 0")
    A("s_waitcnt lgkmcnt(0)")
    stamp(2)
    uid=[0]
    def qk(b):
        for t in range(4):
            A(f"v_mfma_f32_16x16x32_bf16 v[{D}:{D+3}], v[{b+4*t}:{b+4*t+3}], v[{Q+4*t}:{Q+4*t+3}], "+("0" if t==0 else f"v[{D}:{D+3}]"))
    def softmax():
        uid[0]+=1; u=uid[0]
        A(f"v_permlane32_swap_b32 v{D}, v{D+1}"); A(f"v_permlane32_swap_b32 v{D+2}, v{D+3}")
        A(f"v_mov_b32_dpp v{t0}, v{D+1} quad_perm:[1,1,3,3] row_mask:0xf bank_mask:0xf")
        A(f"v_mov_b32_dpp v{t1}, v{D+3} quad_perm:[1,1,3,3] row_mask:0xf bank_mask:0xf")
        dpp("v_add_f32",s0,D,t0,"quad_perm:[0,0,2,2]"); dpp("v_add_f32",s1,D+2,t1,"quad_perm:[0,0,2,2]")
        A(f"v_cvt_pk_bf16_f32 v{t0}, v{s0}, v{s1}")
        A(f"v_lshlrev_b32 v{s0}, 16, v{t0}"); A(f"v_and_b32 v{s1}, 0xffff0000, v{t0}")
        A(f"v_max_f32 v{t1}, v{s0}, v{s1}")
        A(f"v_cmp_gt_f32 vcc, v{t1}, v{vm}")
        A(f"s_cbranch_vccz L_nomax{u}")
        xrow("v_max_f32",t1,t2)
        A(f"v_max_f32 v{t1}, v{t1}, v{vm}")
        A(f"v_sub_f32 v{t2}, v{vm}, v{t1}"); A(f"v_mul_f32 v{t2}, s40, v{t2}"); A(f"v_exp_f32 v{t2}, v{t2}")
        A(f"v_mov_b32 v{vm}, v{t1}")
        A(f"v_mul_f32 v{vl}, v{vl}, v{t2}")
        for r in range(8): A(f"v_mul_f32 v{AC0+r}, v{AC0+r}, v{t2}")
        A(f"L_nomax{u}:")
        A(f"v_sub_f32 v{s0}, v{s0}, v{vm}"); A(f"v_sub_f32 v{s1}, v{s1}, v{vm}")
        A(f"v_mul_f32 v{s0}, s40, v{s0}"); A(f"v_mul_f32 v{s1}, s40, v{s1}")
        A(f"v_exp_f32 v{s0}, v{s0}"); A(f"v_exp_f32 v{s1}, v{s1}")
        A(f"v_add_f32 v{vl}, v{vl}, v{s0}")
        A(f"v_cvt_pk_bf16_f32 v{t0}, v{s0}, v{s1}")
        A(f"v_add_f32 v{vl}, v{vl}, v{s1}")
        A(f"v_lshlrev_b32 v{t1}, 16, v{t0}"); A(f"v_and_b32 v{t2}, 0xffff0000, v{t0}")
        A(f"v_fma_f32 v{s0}, -v{t1}, v{SEL}, v{s0}"); A(f"v_fma_f32 v{s1}, -v{t2}, v{SEL}, v{s1}")
        A(f"v_cvt_pk_bf16_f32 v{t0}, v{s0}, v{s0}"); A(f"v_cvt_pk_bf16_f32 v{t1}, v{s1}, v{s1}")
        for t in range(4): A(f"v_and_b32 v{B0+t}, v{t0}, v{M+t}")
        for t in range(4): A(f"v_and_b32 v{B1+t}, v{t1}, v{M+t}")
    def pv(b):
        for u in range(4):
            ac=AC1 if (u&1) else AC0; bb=B1 if (u>>1) else B0
            A(f"v_mfma_f32_16x16x32_bf16 v[{ac}:{ac+3}], v[{b+16+4*u}:{b+16+4*u+3}], v[{bb}:{bb+3}], v[{ac}:{ac+3}]")
    A("L_loop:")
    for sl,b in enumerate(RING):
        A(f"s_cmp_eq_u32 s{38+sl}, 0"); A("s_cbranch_scc1 L_sdone")
        A("s_waitcnt vmcnt(12)")
        qk(b)
        A(f"s_cmp_lt_u32 s37, {S}"); A(f"s_cbranch_scc1 L_st{sl}")
        if DYN:
            A("s_barrier")
            A(f"ds_read_b32 v{t0}, v{vT} offset:{512+4*sl}"); A("s_waitcnt lgkmcnt(0)")
            A(f"v_readfirstlane_b32 s43, v{t0}")
            A("s_cmp_ge_u32 s37, 1200"); A(f"s_cselect_b32 s43, {POOL}, s43")
            A(f"s_cmp_lt_u32 s43, {POOL}")
            A("s_cselect_b32 s30, 0x10000000, 0"); A("s_cselect_b32 s34, 0x10000000, 0"); A(f"s_cselect_b32 s{38+sl}, 1, 0")
            A(f"s_min_u32 s43, s43, {POOL-1}"); A("s_lshl_b32 s43, s43, 14"); A("s_add_u32 s36, s41, s43")
        else:
            A("s_mov_b32 s30, 0"); A("s_mov_b32 s34, 0"); A(f"s_mov_b32 s{38+sl}, 0"); A("s_mov_b32 s36, 0")
        A(f"L_st{sl}:")
        kloads(b)
        softmax()
        A("s_waitcnt vmcnt(12)")
        pv(b)
        vloads(b)
        A(f"s_add_u32 s36, s36, {RB}"); A("s_add_u32 s37, s37, 1")
        if DYN and sl==(S-1-LA-extras)%2:
            A(f"s_cmp_lg_u32 s37, {S-LA}"); A("s_cbranch_scc1 L_nokick"); A("s_barrier"); A("L_nokick:")
    A("s_cmp_eq_u32 s42, 0"); A("s_cbranch_scc1 L_loop")
    A("s_mov_b32 s42, 0")
    A("s_waitcnt vmcnt(16)")
    for b in EXT:
        qk(b); softmax(); pv(b)
    stamp(3)
    A("s_branch L_loop")
    A("L_sdone:")
    stamp(4)
    for r in range(8): dpp("v_add_f32",AC0+r,AC0+r,AC0+r,"row_ror:8")
    A("s_mov_b32 s46, 0xff00ff00"); A("s_mov_b32 s47, 0xff00ff00")
    for r in range(4): A(f"v_cndmask_b32 v{AC0+r}, v{AC0+r}, v{AC1+r}, s[46:47]")
    A("s_lshl_b32 s43, s3, 10"); A(f"v_lshl_add_u32 v{t0}, v0, 4, s43")
    A(f"ds_write_b128 v{t0}, v[{AC0}:{AC0+3}] offset:1024")
    xrow("v_add_f32",vl,t2)
    A("s_lshl_b32 s43, s3, 3"); A(f"v_mov_b32 v{t0}, s43")
    A(f"v_mov_b32 v{s0}, v{vm}"); A(f"v_mov_b32 v{s1}, v{vl}")
    A("s_mov_b64 exec, 1")
    A(f"ds_write_b64 v{t0}, v[{s0}:{s1}] offset:640")
    A("s_waitcnt lgkmcnt(0)")
    A("s_barrier")
    write_stamps()
    A("s_endpgm")

    X=10; XL=24; M=38; AA=42; AB=50; T=58; NEG=70; P=74; BB=78; DD=94; XC=110; BF=111; W1=112; W2=168; WD=112; WO=176
    vL16=3
    A("L_helper:")
    A("s_setprio 3")
    A("s_lshr_b32 s62, s2, 5"); A("s_lshl_b32 s62, s62, 3"); A("s_and_b32 s43, s2, 7"); A("s_add_u32 s62, s62, s43"); A("s_lshl_b32 s62, s62, 2")
    A("s_bfe_u32 s43, s2, 0x20003"); A("s_add_u32 s62, s62, s43")
    A("v_lshrrev_b32 v4, 1, v0"); A("v_lshlrev_b32 v1, 1, v4")
    A("v_and_b32 v5, 1, v0"); A("v_lshlrev_b32 v2, 13, v4"); A("v_lshl_add_u32 v2, v5, 4, v2")
    A("v_mul_u32_u24 v6, 3584, v4"); A("v_lshl_add_u32 v6, v5, 4, v6")
    A(f"v_lshlrev_b32 v{vL16}, 4, v0")
    A("v_lshrrev_b32 v7, 4, v0"); A("v_lshl_add_u32 v4, v5, 2, v7"); A("v_lshlrev_b32 v4, 3, v4")
    for u in range(14): A(f"v_mov_b32 v{X+u}, 0")
    for r in range(4): A(f"v_mov_b32 v{NEG+r}, -1")
    A("s_waitcnt lgkmcnt(0)")
    srd(28,4,900); srd(32,10,448*8192); srd(36,26,hex(WSN))
    for u in range(14): A(f"buffer_load_short_d16_hi v{X+u}, v1, s[28:31], 0 offen offset:{64*u}")
    A("s_lshl_b32 s43, s62, 5")
    for u in range(14):
        A(f"buffer_load_dwordx4 v[{W1+4*u}:{W1+4*u+3}], v2, s[32:35], s43 offen {WNT}")
        if u<13: A("s_add_u32 s43, s43, 0x40000")
    A("s_lshl_b32 s63, s62, 6")
    A(f"buffer_load_dword v5, v4, s[36:39], s63 offen offset:{QBUF+4} sc1")
    A("s_lshl_b32 s59, s60, 10")
    A(f"buffer_load_dwordx4 v[{P}:{P+3}], v{vL16}, s[36:39], s59 offen offset:{QBUF} sc1")
    A("s_lshl_b32 s43, s2, 11"); A(f"s_add_u32 s58, s43, {INB1}")
    A(f"buffer_store_dwordx4 v[{NEG}:{NEG+3}], v{vL16}, s[36:39], s58 offen sc1")
    A(f"buffer_store_dwordx4 v[{NEG}:{NEG+3}], v{vL16}, s[36:39], s58 offen offset:1024 sc1")
    A("s_cmp_ge_u32 s62, 144"); A("s_cselect_b32 s43, 0, 0x70000000"); A(f"v_add_u32 v8, s43, v{vL16}")
    A("s_sub_u32 s57, s62, 144"); A("s_cselect_b32 s57, 0, s57")
    A("s_lshl_b32 s56, s57, 12"); A(f"s_add_u32 s56, s56, {INB2}")
    for k in range(4): A(f"buffer_store_dwordx4 v[{NEG}:{NEG+3}], v8, s[36:39], s56 offen offset:{1024*k} sc1")
    A("s_lshl_b32 s55, s57, 11"); A(f"s_add_u32 s55, s55, {INB2F}")
    for k in range(2): A(f"buffer_store_dwordx4 v[{NEG}:{NEG+3}], v8, s[36:39], s55 offen offset:{1024*k} sc1")
    A("s_cmp_eq_u32 s61, 0"); A("s_cselect_b32 s43, 0, 0x70000000"); A("v_mov_b32 v8, s43"); A("v_mov_b32 v9, 0")
    A("s_lshl_b32 s54, s60, 8"); A(f"s_add_u32 s54, s54, {TICK}")
    A("s_mov_b64 exec, 1")
    A("buffer_store_dword v9, v8, s[36:39], s54 offen sc1")
    A("s_mov_b64 exec, -1")
    masks(M,T)
    def allred(r,t):
        dpp("v_add_f32",r,r,r,"quad_perm:[2,3,0,1]"); dpp("v_add_f32",r,r,r,"row_ror:4"); dpp("v_add_f32",r,r,r,"row_ror:8")
        xrow("v_add_f32",r,t)
    A("s_waitcnt vmcnt(25)")
    A(f"v_add_f32 v{T}, v{X}, v{X+1}"); A(f"v_add_f32 v{T+1}, v{X+2}, v{X+3}")
    for u in range(4,14,2):
        A(f"v_add_f32 v{T}, v{T}, v{X+u}"); A(f"v_add_f32 v{T+1}, v{T+1}, v{X+u+1}")
    A(f"v_add_f32 v{T}, v{T}, v{T+1}")
    allred(T,T+1)
    A(f"v_mul_f32 v{T}, {f2h(1/448)}, v{T}")
    for u in range(14): A(f"v_sub_f32 v{XL+u}, v{X+u}, v{T}")
    A(f"v_mul_f32 v{T+1}, v{XL}, v{XL}"); A(f"v_mul_f32 v{T+2}, v{XL+1}, v{XL+1}")
    for u in range(2,14,2):
        A(f"v_fmac_f32 v{T+1}, v{XL+u}, v{XL+u}"); A(f"v_fmac_f32 v{T+2}, v{XL+u+1}, v{XL+u+1}")
    A(f"v_add_f32 v{T+1}, v{T+1}, v{T+2}")
    allred(T+1,T+2)
    A(f"v_mul_f32 v{T+1}, {f2h(1/448)}, v{T+1}")
    A(f"v_cvt_pk_bf16_f32 v{T+2}, v{T}, v{T+1}")
    A(f"v_lshlrev_b32 v{T}, 16, v{T+2}"); A(f"v_and_b32 v{T+1}, 0xffff0000, v{T+2}")
    A(f"v_add_f32 v{T+1}, {f2h(1e-5)}, v{T+1}")
    A(f"v_cvt_pk_bf16_f32 v{T+1}, v{T+1}, v{T+1}"); A(f"v_and_b32 v{T+1}, 0xffff0000, v{T+1}")
    A(f"v_sqrt_f32 v{T+1}, v{T+1}")
    A(f"v_cvt_pk_bf16_f32 v{T+1}, v{T+1}, v{T+1}"); A(f"v_and_b32 v{T+1}, 0xffff0000, v{T+1}")
    A(f"v_rcp_f32 v{T+1}, v{T+1}")
    for u in range(0,14,2):
        a,b=X+u,X+u+1
        A(f"v_sub_f32 v{a}, v{a}, v{T}"); A(f"v_sub_f32 v{b}, v{b}, v{T}")
        A(f"v_cvt_pk_bf16_f32 v{T+2}, v{a}, v{b}")
        A(f"v_lshlrev_b32 v{a}, 16, v{T+2}"); A(f"v_and_b32 v{b}, 0xffff0000, v{T+2}")
        A(f"v_mul_f32 v{a}, v{a}, v{T+1}"); A(f"v_mul_f32 v{b}, v{b}, v{T+1}")
        A(f"v_cvt_pk_bf16_f32 v{T+2}, v{a}, v{b}")
        A(f"v_lshlrev_b32 v{a}, 16, v{T+2}"); A(f"v_and_b32 v{b}, 0xffff0000, v{T+2}")
        A(f"v_and_b32 v{XL+u}, 0xffff, v{T+2}"); A(f"v_lshrrev_b32 v{XL+u+1}, 16, v{T+2}")
    def gemvA(W,a):
        for u in range(14):
            for t in range(4):
                A(f"v_dot2_f32_bf16 v{a+2*t}, v{W+4*u+t}, v{XL+u}, "+("0" if u==0 else f"v{a+2*t}"))
                A(f"v_dot2_f32_bf16 v{a+2*t+1}, v{W+4*u+t}, v{X+u}, "+("0" if u==0 else f"v{a+2*t+1}"))
        merge4(a,a+2,a+4,a+6); merge4(a+1,a+3,a+5,a+7)
        for ctl in ("quad_perm:[2,3,0,1]","row_ror:4","row_ror:8"):
            dpp("v_add_f32",a,a,a,ctl); dpp("v_add_f32",a+1,a+1,a+1,ctl)
    A("s_waitcnt vmcnt(11)")
    gemvA(W1,AA)
    A("s_waitcnt vmcnt(9)")
    A(f"v_cvt_pk_bf16_f32 v{T}, v{AA}, v{AA+1}"); A(f"v_add_u32 v{T+1}, 1, v5")
    A(f"v_add_u32 v8, 1, v{P+1}"); A(f"v_add_u32 v9, 1, v{P+3}")
    A("s_mov_b32 exec_lo, 0x00030003"); A("s_mov_b32 exec_hi, 0x00030003")
    A(f"buffer_store_dwordx2 v[{T}:{T+1}], v4, s[36:39], s63 offen offset:{QBUF} sc1")
    A("s_mov_b64 exec, -1")
    stamp(1)
    srd(40+4,24,256)
    A("s_lshr_b32 s43, s62, 4"); A("s_lshl_b32 s43, s43, 4"); A(f"v_mov_b32 v{T+2}, s43"); A(f"v_mov_b32 v{T+3}, 1")
    A("s_lshl_b32 s43, s60, 4"); A(f"v_mov_b32 v{T+4}, s43")
    A(f"buffer_load_dwordx4 v[{P}:{P+3}], v{vL16}, s[36:39], s59 offen offset:{QBUF} sc1")
    A("s_waitcnt vmcnt(0)")
    A("s_mov_b64 exec, 1")
    A(f"buffer_atomic_add v{T+3}, v{T+2}, s[44:47], 0 offen")
    A("s_mov_b64 exec, -1")
    A("s_mov_b32 s53, 0")
    A("L_qpoll:")
    A(f"v_cmp_ne_u32 vcc, v8, v{P+1}"); A(f"v_cmp_ne_u32 s[48:49], v9, v{P+3}")
    A("s_or_b64 vcc, vcc, s[48:49]")
    A("s_cbranch_vccz L_qok")
    A("s_add_u32 s53, s53, 1")
    A("s_and_b32 s43, s53, 7"); A("s_cbranch_scc1 L_qld")
    A(f"s_cmp_ge_u32 s53, {SPIN}"); A("s_cbranch_scc1 L_end")
    A(f"buffer_load_dword v{T+5}, v{T+4}, s[44:47], 0 offen sc1"); A("s_waitcnt vmcnt(0)")
    A(f"v_cmp_ne_u32 vcc, 16, v{T+5}")
    A("s_cbranch_vccnz L_qld")
    A(f"buffer_load_dwordx4 v[{P}:{P+3}], v{vL16}, s[36:39], s59 offen offset:{QBUF} sc1"); A("s_waitcnt vmcnt(0)")
    A("s_branch L_qok")
    A("L_qld:")
    A(f"buffer_load_dwordx4 v[{P}:{P+3}], v{vL16}, s[36:39], s59 offen offset:{QBUF} sc1"); A("s_waitcnt vmcnt(0)")
    A("s_branch L_qpoll")
    A("L_qok:")
    A(f"v_mov_b32 v{P+1}, v{P+2}"); A(f"v_lshlrev_b32 v{T}, 3, v0")
    A(f"ds_write_b64 v{T}, v[{P}:{P+1}]")
    A("s_waitcnt lgkmcnt(0)")
    stamp(2)
    A("s_barrier")
    A("s_mov_b32 s53, 0")
    A("L_apoll:")
    A(f"buffer_load_dword v{T}, v{vL16}, s[44:47], 0 offen sc1"); A("s_waitcnt vmcnt(0)")
    A(f"v_cmp_ne_u32 vcc, 16, v{T}")
    A("s_and_b32 s43, vcc_lo, 0xffff"); A("s_cbranch_scc0 L_aok")
    A("s_sleep 32")
    A("s_add_u32 s53, s53, 1"); A(f"s_cmp_ge_u32 s53, {SPIN}"); A("s_cbranch_scc1 L_end")
    A("s_branch L_apoll")
    A("L_aok:")
    stamp(3)
    A("v_bfe_u32 v4, v0, 3, 1"); A("v_lshlrev_b32 v4, 5, v4"); A("v_lshrrev_b32 v7, 4, v0"); A("v_lshl_add_u32 v4, v7, 3, v4")
    A("v_and_b32 v5, 7, v0"); A("v_add_u32 v4, v4, v5")
    A("v_and_b32 v5, 15, v0"); A("v_lshlrev_b32 v5, 4, v5")
    A("s_mov_b32 s50, 0xff00ff00"); A("s_mov_b32 s51, 0xff00ff00")
    def rowloads(W,voff,srdr,soffs,flags):
        for cb in range(4):
            if cb==3: A("s_mov_b32 exec_lo, 0x00ff00ff"); A("s_mov_b32 exec_hi, 0x00ff00ff")
            for u in range(4):
                sg,im=soffs[u]
                A(f"buffer_load_dwordx4 v[{W+16*u+4*cb}:{W+16*u+4*cb+3}], v{voff}, {srdr}, {sg} offen offset:{im+256*cb} {flags}")
        A("s_mov_b64 exec, -1")
    def gemvB(W,srcs,voff,sbase,sbase2):
        for u,(r,k) in enumerate(srcs):
            for t in range(4): dpp("v_and_b32",BB+4*u+t,r,M+t,f"quad_perm:[{k},{k},{k},{k}]")
        for u in range(4):
            for cb in range(4):
                A(f"v_mfma_f32_16x16x32_bf16 v[{DD+4*cb}:{DD+4*cb+3}], v[{W+16*u+4*cb}:{W+16*u+4*cb+3}], v[{BB+4*u}:{BB+4*u+3}], "+("0" if u==0 else f"v[{DD+4*cb}:{DD+4*cb+3}]"))
        for half in range(2):
            d=DD+8*half
            for r in range(4): A(f"v_cndmask_b32 v{d+r}, v{d+r}, v{d+4+r}, s[50:51]")
            for r in range(4): A(f"v_min_u32 v{d+r}, -2, v{d+r}")
            if half: A("s_mov_b32 exec_hi, 0x00ff00ff")
            A(f"buffer_store_dwordx4 v[{d}:{d+3}], v{voff}, s[36:39], {sbase2 if half else sbase} offen sc1")
        A("s_mov_b64 exec, -1")
    A("s_cmp_ge_u32 s62, 112"); A("s_cbranch_scc1 L_noffn")
    srd(32,16,448*3584)
    A("s_lshl_b32 s43, s62, 5")
    for u in range(14):
        A(f"buffer_load_dwordx4 v[{W1+4*u}:{W1+4*u+3}], v6, s[32:35], s43 offen {WNT}")
        if u<13: A(f"s_add_u32 s43, s43, {32*3584}")
    srd(32,18,448*3584)
    A("s_lshl_b32 s43, s62, 5")
    for u in range(14):
        A(f"buffer_load_dwordx4 v[{W2+4*u}:{W2+4*u+3}], v6, s[32:35], s43 offen {WNT}")
        if u<13: A(f"s_add_u32 s43, s43, {32*3584}")
    A("s_waitcnt vmcnt(14)")
    gemvA(W1,AA)
    A("s_waitcnt vmcnt(0)")
    gemvA(W2,AB)
    srd(32,20,1792*896)
    A("v_mul_u32_u24 v8, 1792, v7"); A("v_add_u32 v8, v8, v5")
    A(f"s_mul_i32 s43, s62, {16*896}"); A(f"s_add_u32 s52, s43, {8*896}")
    rowloads(WD,8,"s[32:35]",[("s43",0),("s43",896),("s52",0),("s52",896)],NT)
    A(f"v_cvt_pk_bf16_f32 v{T}, v{AA}, v{AA+1}"); A(f"v_cvt_pk_bf16_f32 v{T+1}, v{AB}, v{AB+1}")
    A(f"v_lshlrev_b32 v{AA}, 16, v{T}"); A(f"v_and_b32 v{AA+1}, 0xffff0000, v{T}")
    A(f"v_lshlrev_b32 v{AB}, 16, v{T+1}"); A(f"v_and_b32 v{AB+1}, 0xffff0000, v{T+1}")
    k0=math.sqrt(2/math.pi); k1=0.044715
    A(f"s_mov_b32 s48, {f2h(k1)}")
    for e in range(2):
        g=AA+e; t=T+2+e
        A(f"v_mul_f32 v{t}, v{g}, v{g}"); A(f"v_mul_f32 v{t}, v{t}, v{g}")
        A(f"v_fma_f32 v{t}, s48, v{t}, v{g}")
        A(f"v_mul_f32 v{t}, {f2h(-2*k0*math.log2(math.e))}, v{t}")
        A(f"v_exp_f32 v{t}, v{t}"); A(f"v_add_f32 v{t}, 1.0, v{t}"); A(f"v_rcp_f32 v{t}, v{t}")
        A(f"v_mul_f32 v{g}, v{g}, v{t}")
    A(f"v_cvt_pk_bf16_f32 v{T}, v{AA}, v{AA+1}")
    A(f"v_lshlrev_b32 v{AA}, 16, v{T}"); A(f"v_and_b32 v{AA+1}, 0xffff0000, v{T}")
    A(f"v_mul_f32 v{AA}, v{AA}, v{AB}"); A(f"v_mul_f32 v{AA+1}, v{AA+1}, v{AB+1}")
    A(f"v_cvt_pk_bf16_f32 v{AA}, v{AA}, v{AA}"); A(f"v_cvt_pk_bf16_f32 v{AA+1}, v{AA+1}, v{AA+1}")
    A("v_lshlrev_b32 v8, 11, v4")
    A("s_lshl_b32 s43, s62, 4"); A(f"s_add_u32 s43, s43, {INB2F}"); A(f"s_add_u32 s52, s43, {64*2048}")
    A("s_waitcnt vmcnt(0)")
    gemvB(WD,[(AA,0),(AA+1,0),(AA,1),(AA+1,1)],8,"s43","s52")
    A("L_noffn:")
    def red64(a):
        merge4(a,a+1,a+2,a+3)
        for ctl in ("row_ror:8","row_ror:4","row_ror:2","row_ror:1"): dpp("v_add_f32",a,a,a,ctl)
    def anyneg(rs,t):
        A(f"v_max3_u32 v{t}, v{rs[0]}, v{rs[1]}, v{rs[2]}")
        rs=rs[3:]
        while len(rs)>=2:
            A(f"v_max3_u32 v{t}, v{t}, v{rs[0]}, v{rs[1]}"); rs=rs[2:]
        if rs: A(f"v_max_u32 v{t}, v{t}, v{rs[0]}")
        A(f"v_cmp_eq_u32 vcc, -1, v{t}")
    A("s_cmp_lt_u32 s62, 144"); A("s_cbranch_scc1 L_nored1")
    A("s_lshr_b32 s43, s57, 3"); A("s_lshl_b32 s43, s43, 5"); A("s_and_b32 s52, s57, 7"); A("s_add_u32 s43, s43, s52"); A("s_lshl_b32 s43, s43, 1")
    A("v_lshlrev_b32 v9, 4, v7"); A("v_add_u32 v9, s43, v9")
    A(f"v_mov_b32 v{XC}, 0")
    A(f"buffer_load_short_d16_hi v{XC}, v9, s[28:31], 0 offen")
    for r in range(4): A(f"v_mov_b32 v{AB+r}, 0")
    A("s_mov_b32 s53, 0")
    A("L_fpoll:")
    A(f"buffer_load_dwordx4 v[{AA}:{AA+3}], v{vL16}, s[36:39], s55 offen sc1")
    A("s_mov_b32 exec_hi, 0x0000ffff")
    A(f"buffer_load_dwordx4 v[{AB}:{AB+3}], v{vL16}, s[36:39], s55 offen offset:1024 sc1")
    A("s_mov_b64 exec, -1")
    A("s_waitcnt vmcnt(0)")
    anyneg([AA,AA+1,AA+2,AA+3,AB,AB+1,AB+2,AB+3],T)
    A("s_cbranch_vccz L_fok")
    A("s_sleep 32")
    A("s_add_u32 s53, s53, 1"); A(f"s_cmp_ge_u32 s53, {SPIN}"); A("s_cbranch_scc1 L_end")
    A("s_branch L_fpoll")
    A("L_fok:")
    for r in range(4): A(f"v_add_f32 v{AA+r}, v{AA+r}, v{AB+r}")
    red64(AA)
    A(f"v_cvt_pk_bf16_f32 v{BF}, v{AA}, v{AA}"); A(f"v_and_b32 v{BF}, 0xffff0000, v{BF}")
    srd(28,22,900)
    A("L_nored1:")
    srd(32,12,4096*896)
    A("v_mul_u32_u24 v8, 7168, v7"); A("v_add_u32 v8, v8, v5")
    A("s_lshl_b32 s43, s60, 8"); A("s_bfe_u32 s52, s61, 0x10001"); A("s_lshl_b32 s52, s52, 7"); A("s_add_u32 s43, s43, s52")
    A("s_lshr_b32 s52, s61, 2"); A("s_lshl_b32 s52, s52, 5"); A("s_add_u32 s43, s43, s52")
    A("s_and_b32 s52, s61, 1"); A("s_lshl_b32 s52, s52, 2"); A("s_add_u32 s43, s43, s52"); A("s_mul_i32 s49, s43, 896")
    wol=lambda: rowloads(WO,8,"s[32:35]",[("s49",896*u) for u in range(4)],NT)
    if not latewo: wol()
    A("v_lshlrev_b32 v4, 12, v4")
    A("v_lshrrev_b32 v5, 2, v0"); A("v_and_b32 v6, 3, v0"); A("v_lshlrev_b32 v6, 4, v6"); A("v_lshl_add_u32 v6, v5, 11, v6")
    A("v_lshlrev_b32 v5, 3, v5")
    A("v_lshlrev_b32 v2, 11, v0")
    A("s_lshl_b32 s43, s60, 15"); A(f"s_add_u32 s43, s43, {INB1}"); A("s_lshl_b32 s52, s61, 6"); A("s_add_u32 s59, s43, s52")
    A("s_lshl_b32 s52, s61, 3"); A("s_add_u32 s63, s43, s52")
    A("s_lshl_b32 s43, s2, 4"); A(f"s_add_u32 s55, s43, {INB2}"); A(f"s_add_u32 s48, s55, {64*4096}")
    A("v_mov_b32 v1, 0")
    stamp(4)
    if DYN:
        TK=240
        A("s_mov_b64 exec, 1")
        A("s_waitcnt vmcnt(0)")
        A("s_barrier")
        def atomic(i):
            A(f"v_mov_b32 v{TK+i}, 1")
            A(f"buffer_atomic_add v{TK+i}, v1, s[36:39], s54 offen sc0")
        for i in range(LA): atomic(i)
        A("s_mov_b32 s53, 0"); A("s_mov_b32 s52, 0")
        A("L_tloop:")
        per=LA*2//math.gcd(LA,2)
        par0=(S-extras)%2
        for q in range(per):
            i=q%LA
            A(f"s_waitcnt vmcnt({LA-1})")
            A(f"ds_write_b32 v1, v{TK+i} offset:{512+4*((q+par0)%2)}")
            A(f"v_readfirstlane_b32 s43, v{TK+i}")
            A("s_waitcnt lgkmcnt(0)")
            atomic(i)
            A("s_barrier")
            A("s_add_u32 s52, s52, 1"); A(f"s_cmp_ge_u32 s52, {1200-S+1}"); A(f"s_cselect_b32 s43, {POOL}, s43")
            A(f"s_cmp_ge_u32 s43, {POOL}"); A("s_addc_u32 s53, s53, 0")
            A("s_cmp_ge_u32 s53, 2"); A("s_cbranch_scc1 L_tdone")
        A("s_branch L_tloop")
        A("L_tdone:")
        A("s_mov_b64 exec, -1")
    A("s_barrier")
    stamp(5)
    O=AA; ML=T
    for w in range(4): A(f"ds_read_b128 v[{O+4*w}:{O+4*w+3}], v{vL16} offset:{1024+1024*w}")
    A(f"ds_read_b128 v[{ML}:{ML+3}], v1 offset:640"); A(f"ds_read_b128 v[{ML+4}:{ML+7}], v1 offset:656")
    if latewo: wol()
    A("s_waitcnt lgkmcnt(0)")
    A(f"v_max3_f32 v{P}, v{ML}, v{ML+2}, v{ML+4}"); A(f"v_max_f32 v{P}, v{P}, v{ML+6}")
    for w in range(4): A(f"v_sub_f32 v{ML+2*w}, v{ML+2*w}, v{P}")
    for w in range(4): A(f"v_mul_f32 v{ML+2*w}, s40, v{ML+2*w}")
    for w in range(4): A(f"v_exp_f32 v{ML+2*w}, v{ML+2*w}")
    A(f"v_mul_f32 v{P+1}, v{ML}, v{ML+1}")
    for r in range(4): A(f"v_mul_f32 v{O+r}, v{ML}, v{O+r}")
    for w in range(1,4):
        for r in range(4): A(f"v_fmac_f32 v{O+r}, v{ML+2*w}, v{O+4*w+r}")
        A(f"v_fmac_f32 v{P+1}, v{ML+2*w}, v{ML+2*w+1}")
    for r in range(4): A(f"v_min_u32 v{O+r}, -2, v{O+r}")
    A(f"buffer_store_dwordx4 v[{O}:{O+3}], v6, s[36:39], s59 offen sc1")
    A(f"v_min_u32 v{P}, -2, v{P}"); A(f"v_min_u32 v{P+1}, -2, v{P+1}")
    A("s_mov_b64 exec, 0xffff")
    A(f"buffer_store_dwordx2 v[{P}:{P+1}], v2, s[36:39], s63 offen offset:1024 sc1")
    A("s_mov_b64 exec, -1")
    A("s_mov_b32 s53, 0")
    O=AB
    A("L_poll1:")
    A(f"buffer_load_dwordx4 v[{O}:{O+3}], v{vL16}, s[36:39], s58 offen sc1")
    A(f"buffer_load_dwordx2 v[{O+4}:{O+5}], v5, s[36:39], s58 offen offset:1024 sc1")
    A("s_add_u32 s53, s53, 1"); A(f"s_cmp_ge_u32 s53, {SPIN}"); A("s_cbranch_scc1 L_end")
    A("s_waitcnt vmcnt(0)")
    anyneg([O,O+1,O+2,O+3,O+4,O+5],T)
    A("s_cbranch_vccnz L_poll1")
    stamp(6)
    dpp("v_max_f32",T,O+4,O+4,"row_ror:4"); dpp("v_max_f32",T,T,T,"row_ror:8"); xrow("v_max_f32",T,T+1)
    A(f"v_sub_f32 v{T}, v{O+4}, v{T}"); A(f"v_mul_f32 v{T}, s40, v{T}"); A(f"v_exp_f32 v{T}, v{T}")
    for r in range(4): A(f"v_mul_f32 v{O+r}, v{O+r}, v{T}")
    A(f"v_mul_f32 v{O+5}, v{O+5}, v{T}")
    merge4(O,O+1,O+2,O+3)
    xrow("v_add_f32",O+5,T+1)
    for ctl in ("row_ror:4","row_ror:8"):
        dpp("v_add_f32",O+5,O+5,O+5,ctl); dpp("v_add_f32",O,O,O,ctl)
    A(f"v_rcp_f32 v{O+5}, v{O+5}"); A(f"v_mul_f32 v{O}, v{O}, v{O+5}")
    A(f"v_cvt_pk_bf16_f32 v{O}, v{O}, v{O}")
    gemvB(WO,[(O,0),(O,1),(O,2),(O,3)],4,"s55","s48")
    A("s_cmp_lt_u32 s62, 144"); A("s_cbranch_scc1 L_hend")
    A("s_mov_b32 s53, 0")
    O=AA
    A("L_poll2:")
    for k in range(4): A(f"buffer_load_dwordx4 v[{O+4*k}:{O+4*k+3}], v{vL16}, s[36:39], s56 offen offset:{1024*k} sc1")
    A("s_add_u32 s53, s53, 1"); A(f"s_cmp_ge_u32 s53, {SPIN}"); A("s_cbranch_scc1 L_end")
    A("s_waitcnt vmcnt(0)")
    anyneg([O+k for k in range(16)],T)
    A("s_cbranch_vccnz L_poll2")
    for r in range(4):
        A(f"v_add_f32 v{O+r}, v{O+r}, v{O+4+r}"); A(f"v_add_f32 v{O+8+r}, v{O+8+r}, v{O+12+r}")
    for r in range(4): A(f"v_add_f32 v{O+r}, v{O+r}, v{O+8+r}")
    red64(O)
    A(f"v_cvt_pk_bf16_f32 v{O}, v{O}, v{O}"); A(f"v_and_b32 v{O}, 0xffff0000, v{O}")
    A(f"v_add_f32 v{O}, v{XC}, v{O}")
    A(f"v_cvt_pk_bf16_f32 v{O}, v{O}, v{O}"); A(f"v_and_b32 v{O}, 0xffff0000, v{O}")
    A(f"v_add_f32 v{O}, v{O}, v{BF}")
    A(f"v_cvt_pk_bf16_f32 v{O}, v{O}, v{O}")
    A("s_mov_b32 exec_lo, 0x00010001"); A("s_mov_b32 exec_hi, 0x00010001")
    A(f"buffer_store_short v{O}, v9, s[28:31], 0 offen")
    A("L_hend:")
    stamp(7)
    write_stamps()
    A("L_end:")
    A("s_endpgm")
    A(f""".section .rodata,"a"
.p2align 6
.amdhsa_kernel {NAME}_kernel
  .amdhsa_next_free_vgpr 256
  .amdhsa_next_free_sgpr 96
  .amdhsa_accum_offset 256
  .amdhsa_group_segment_fixed_size 0
  .amdhsa_kernarg_size 96
  .amdhsa_user_sgpr_count 2
  .amdhsa_user_sgpr_kernarg_segment_ptr 1
  .amdhsa_system_sgpr_workgroup_id_x 1
.end_amdhsa_kernel""")
    body=pad(L)
    return "\n".join(body)+"\n"

if __name__=='__main__':
    kw={}
    out=sys.argv[1]
    for t in sys.argv[2:]:
        k,v=t.split('=')
        if k in('S','LA','extras'): v=int(v)
        elif k in('stamps','latewo'): v=bool(int(v))
        else: v=v.replace('_',' ')
        kw[k]=v
    open(out,'w').write(gen(**kw))
```

```python
import struct, sys, math
from asmlib import pad
NAME='parallel_sum__mha_block_cached__geglu_ffn__decode'
def f2h(x): return '0x%08x'%struct.unpack('<I',struct.pack('<f',x))[0]
C_SC=f2h(math.log2(math.e)/16)
QBUF=0x0; INB1=0x10000; INB2=0x100000; INB2F=0x180000; TICK=0x1C0000; WSN=0x200000
RB=16384
SPIN=1<<17

def gen(S=64, NT='nt', WNT='nt', stamps=False, LA=1, latewo=False, extras=None, header=True, RT=1, thr=None, pthr=None, b0=1, dbg='', MID=28):
    L=[]; A=L.append
    DYN = S<64
    POOL=(64-S)*16
    if extras is None: extras=6-RT
    if thr is None: thr=4+(RT-1)*8
    if pthr is None: pthr=thr
    st=[0]
    def stamp(k):
        if stamps: A(f"s_memrealtime s[{64+2*k}:{65+2*k}]")
    def srd(b,p,n):
        A(f"s_mov_b32 s{b}, s{p}"); A(f"s_mov_b32 s{b+1}, s{p+1}"); A(f"s_mov_b32 s{b+2}, {n}"); A(f"s_mov_b32 s{b+3}, 0x00020000")
    def write_stamps():
        if not stamps: return
        A("s_waitcnt lgkmcnt(0)")
        A("s_mov_b32 s80, s26"); A("s_mov_b32 s81, s27"); A("s_mov_b32 s82, 0x40000000"); A("s_mov_b32 s83, 0x00020000")
        A("s_mul_i32 s84, s2, 5"); A("s_add_u32 s84, s84, s3"); A("s_lshl_b32 s84, s84, 6"); A("s_add_u32 s84, s84, 0x20000000")
        A("s_mov_b64 exec, 1"); A("v_mov_b32 v1, 0")
        for k in range(4):
            for i in range(4): A(f"v_mov_b32 v{4+i}, s{64+4*k+i}")
            A(f"buffer_store_dwordx4 v[4:7], v1, s[80:83], s84 offen offset:{16*k}")
            A("s_nop 1")
        A("s_waitcnt vmcnt(0)")
    def masks(b, tmp):
        A(f"v_and_b32 v{tmp}, 1, v0"); A(f"v_cmp_eq_u32 vcc, 1, v{tmp}")
        A(f"v_mov_b32 v{tmp}, 0xffff"); A(f"v_mov_b32 v{tmp+1}, 0xffff0000")
        A(f"v_cndmask_b32 v{tmp}, v{tmp}, v{tmp+1}, vcc")
        A(f"v_bfe_u32 v{tmp+1}, v0, 1, 2")
        for t in range(4):
            A(f"v_cmp_eq_u32 vcc, {t}, v{tmp+1}")
            A(f"v_cndmask_b32 v{b+t}, 0, v{tmp}, vcc")
    def dpp(op,d,a,b,ctl): A(f"{op}_dpp v{d}, v{a}, v{b} {ctl} row_mask:0xf bank_mask:0xf")
    def xrow(op,r,t):
        A(f"v_mov_b32 v{t}, v{r}"); A(f"v_permlane16_swap_b32 v{r}, v{t}"); A(f"{op} v{r}, v{r}, v{t}")
        A(f"v_mov_b32 v{t}, v{r}"); A(f"v_permlane32_swap_b32 v{r}, v{t}"); A(f"{op} v{r}, v{r}, v{t}")
    def merge4(a,b,c,d):
        A(f"v_permlane32_swap_b32 v{a}, v{c}"); A(f"v_permlane32_swap_b32 v{b}, v{d}")
        A(f"v_add_f32 v{a}, v{a}, v{c}"); A(f"v_add_f32 v{b}, v{b}, v{d}")
        A(f"v_permlane16_swap_b32 v{a}, v{b}"); A(f"v_add_f32 v{a}, v{a}, v{b}")

    if header:
        A("; decode block: x + attention(LN(x)) @ wo + GEGLU-FFN(LN(x)); one workgroup per CU, 4 streaming waves + 1 helper wave")
        A("; @launch grid=(256,1,1) block=(320,1,1) lds=8192")
    A('.amdgcn_target "amdgcn-amd-amdhsa--gfx950"')
    A(".text"); A(f".globl {NAME}_kernel"); A(".p2align 8"); A(f".type {NAME}_kernel,@function"); A(f"{NAME}_kernel:")
    if stamps:
        for k in range(1,8): A(f"s_mov_b64 s[{64+2*k}:{65+2*k}], 0")
    stamp(0)
    A("s_cmp_ge_u32 s2, 256"); A("s_cbranch_scc1 L_end")
    A("s_load_dwordx16 s[4:19], s[0:1], 0")
    A("s_load_dwordx8 s[20:27], s[0:1], 64")
    A("v_lshrrev_b32 v1, 6, v0"); A("v_and_b32 v0, 63, v0"); A("v_readfirstlane_b32 s3, v1")
    A("s_lshr_b32 s60, s2, 4"); A("s_and_b32 s61, s2, 15")
    A(f"s_mov_b32 s40, {C_SC}")
    A("s_cmp_eq_u32 s3, 4"); A("s_cbranch_scc1 L_helper")

    vK,vV,vT=1,2,3; M=4; SEL=8; vm=9; vl=10; D=12; AC0=16; AC1=20; B0=24; B1=28; Q=32
    s0,s1,t0,t1,t2=48,49,50,51,52
    RING=[56+32*i for i in range(RT)]; EXT=[56+32*(RT+i) for i in range(extras)]
    A("v_and_b32 v1, 7, v0"); A("v_lshlrev_b32 v1, 9, v1")
    A("v_bfe_u32 v2, v0, 3, 1"); A("v_lshl_add_u32 v1, v2, 6, v1")
    A("v_lshrrev_b32 v3, 4, v0"); A("v_lshl_add_u32 v1, v3, 4, v1")
    A("v_bfe_u32 v2, v0, 4, 1"); A("v_lshlrev_b32 v2, 11, v2")
    A("v_lshrrev_b32 v3, 5, v0"); A("v_lshl_add_u32 v2, v3, 9, v2")
    A("v_and_b32 v3, 15, v0"); A("v_lshl_add_u32 v2, v3, 4, v2")
    A("s_lshl_b32 s41, s60, 24"); A("s_lshl_b32 s43, s3, 12"); A("s_add_u32 s41, s41, s43")
    A(f"s_mul_i32 s36, s61, {S*RB}"); A("s_add_u32 s36, s36, s41")
    A(f"s_add_u32 s41, s41, {16*S*RB}")
    A("s_waitcnt lgkmcnt(0)")
    srd(28,6,'0x10000000'); srd(32,8,'0x10000000')
    def kloads(b):
        for t in range(4): A(f"buffer_load_dwordx4 v[{b+4*t}:{b+4*t+3}], v{vK}, s[28:31], s36 offen offset:{128*t} {NT}")
    def vloads(b):
        for u in range(4): A(f"buffer_load_dwordx4 v[{b+16+4*u}:{b+16+4*u+3}], v{vV}, s[32:35], s36 offen offset:{(u>>1)*1024+(u&1)*256} {NT}")
    if b0==2: A("s_barrier")
    for n,b in enumerate(RING+EXT):
        if 8*n>pthr: A(f"s_waitcnt vmcnt({pthr})")
        kloads(b)
        if n==0:
            masks(M,t0)
            A(f"v_and_b32 v{t0}, 8, v0"); A(f"v_cmp_eq_u32 vcc, 8, v{t0}"); A(f"v_cndmask_b32 v{SEL}, 0, 1.0, vcc")
            A(f"v_mov_b32 v{vm}, 0xff7fffff"); A(f"v_mov_b32 v{vl}, 0")
            for r in range(8): A(f"v_mov_b32 v{AC0+r}, 0")
            A(f"v_and_b32 v{vT}, 1, v0"); A(f"v_lshlrev_b32 v{vT}, 6, v{vT}")
            A(f"v_lshrrev_b32 v{t0}, 4, v0"); A(f"v_lshl_add_u32 v{vT}, v{t0}, 4, v{vT}")
            if b0==1: A("s_barrier")
        if 8*n+4>pthr: A(f"s_waitcnt vmcnt({pthr})")
        vloads(b)
        A(f"s_add_u32 s36, s36, {RB}")
    A(f"s_mov_b32 s37, {RT+extras}"); A("s_mov_b32 s38, 1"); A("s_mov_b32 s39, 1"); A("s_mov_b32 s42, 1")
    stamp(1)
    A("s_barrier")
    for t in range(4): A(f"ds_read_b128 v[{Q+4*t}:{Q+4*t+3}], v{vT} offset:{128*t}")
    A(f"v_mov_b32 v{vT}, 0")
    A("s_waitcnt lgkmcnt(0)")
    stamp(2)
    uid=[0]
    def qk(b):
        for t in range(4):
            A(f"v_mfma_f32_16x16x32_bf16 v[{D}:{D+3}], v[{b+4*t}:{b+4*t+3}], v[{Q+4*t}:{Q+4*t+3}], "+("0" if t==0 else f"v[{D}:{D+3}]"))
    def softmax():
        uid[0]+=1; u=uid[0]
        A(f"v_permlane32_swap_b32 v{D}, v{D+1}"); A(f"v_permlane32_swap_b32 v{D+2}, v{D+3}")
        A(f"v_mov_b32_dpp v{t0}, v{D+1} quad_perm:[1,1,3,3] row_mask:0xf bank_mask:0xf")
        A(f"v_mov_b32_dpp v{t1}, v{D+3} quad_perm:[1,1,3,3] row_mask:0xf bank_mask:0xf")
        dpp("v_add_f32",s0,D,t0,"quad_perm:[0,0,2,2]"); dpp("v_add_f32",s1,D+2,t1,"quad_perm:[0,0,2,2]")
        A(f"v_cvt_pk_bf16_f32 v{t0}, v{s0}, v{s1}")
        A(f"v_lshlrev_b32 v{s0}, 16, v{t0}"); A(f"v_and_b32 v{s1}, 0xffff0000, v{t0}")
        A(f"v_max_f32 v{t1}, v{s0}, v{s1}")
        A(f"v_cmp_gt_f32 vcc, v{t1}, v{vm}")
        A(f"s_cbranch_vccz L_nomax{u}")
        xrow("v_max_f32",t1,t2)
        A(f"v_max_f32 v{t1}, v{t1}, v{vm}")
        A(f"v_sub_f32 v{t2}, v{vm}, v{t1}"); A(f"v_mul_f32 v{t2}, s40, v{t2}"); A(f"v_exp_f32 v{t2}, v{t2}")
        A(f"v_mov_b32 v{vm}, v{t1}")
        A(f"v_mul_f32 v{vl}, v{vl}, v{t2}")
        for r in range(8): A(f"v_mul_f32 v{AC0+r}, v{AC0+r}, v{t2}")
        A(f"L_nomax{u}:")
        A(f"v_sub_f32 v{s0}, v{s0}, v{vm}"); A(f"v_sub_f32 v{s1}, v{s1}, v{vm}")
        A(f"v_mul_f32 v{s0}, s40, v{s0}"); A(f"v_mul_f32 v{s1}, s40, v{s1}")
        A(f"v_exp_f32 v{s0}, v{s0}"); A(f"v_exp_f32 v{s1}, v{s1}")
        A(f"v_add_f32 v{vl}, v{vl}, v{s0}")
        A(f"v_cvt_pk_bf16_f32 v{t0}, v{s0}, v{s1}")
        A(f"v_add_f32 v{vl}, v{vl}, v{s1}")
        A(f"v_lshlrev_b32 v{t1}, 16, v{t0}"); A(f"v_and_b32 v{t2}, 0xffff0000, v{t0}")
        A(f"v_fma_f32 v{s0}, -v{t1}, v{SEL}, v{s0}"); A(f"v_fma_f32 v{s1}, -v{t2}, v{SEL}, v{s1}")
        A(f"v_cvt_pk_bf16_f32 v{t0}, v{s0}, v{s0}"); A(f"v_cvt_pk_bf16_f32 v{t1}, v{s1}, v{s1}")
        for t in range(4): A(f"v_and_b32 v{B0+t}, v{t0}, v{M+t}")
        for t in range(4): A(f"v_and_b32 v{B1+t}, v{t1}, v{M+t}")
    def pv(b):
        for u in range(4):
            ac=AC1 if (u&1) else AC0; bb=B1 if (u>>1) else B0
            A(f"v_mfma_f32_16x16x32_bf16 v[{ac}:{ac+3}], v[{b+16+4*u}:{b+16+4*u+3}], v[{bb}:{bb+3}], v[{ac}:{ac+3}]")
    A("L_loop:")
    for sl in range(2):
        b=RING[sl%RT]; fl=38+sl%RT
        A(f"s_cmp_eq_u32 s{fl}, 0"); A("s_cbranch_scc1 L_sdone")
        A(f"s_waitcnt vmcnt({thr})")
        qk(b)
        A(f"s_cmp_lt_u32 s37, {S}"); A(f"s_cbranch_scc1 L_st{sl}")
        if DYN:
            A("s_barrier")
            A(f"ds_read_b32 v{t0}, v{vT} offset:{512+4*sl}"); A("s_waitcnt lgkmcnt(0)")
            A(f"v_readfirstlane_b32 s43, v{t0}")
            A("s_cmp_ge_u32 s37, 1200"); A(f"s_cselect_b32 s43, {POOL}, s43")
            A(f"s_cmp_lt_u32 s43, {POOL}")
            A("s_cselect_b32 s30, 0x10000000, 0"); A("s_cselect_b32 s34, 0x10000000, 0"); A(f"s_cselect_b32 s{fl}, 1, 0")
            A(f"s_min_u32 s43, s43, {POOL-1}"); A("s_lshl_b32 s43, s43, 14"); A("s_add_u32 s36, s41, s43")
        else:
            A("s_mov_b32 s30, 0"); A("s_mov_b32 s34, 0"); A(f"s_mov_b32 s{fl}, 0"); A("s_mov_b32 s36, 0")
        A(f"L_st{sl}:")
        kloads(b)
        softmax()
        A(f"s_waitcnt vmcnt({thr})")
        pv(b)
        vloads(b)
        A(f"s_add_u32 s36, s36, {RB}"); A("s_add_u32 s37, s37, 1")
        if sl==(MID-1-extras-RT)%2:
            A(f"s_cmp_lg_u32 s37, {MID}"); A("s_cbranch_scc1 L_nomid"); A("s_barrier"); A("L_nomid:")
        if DYN and sl==(S-1-LA-extras-RT)%2:
            A(f"s_cmp_lg_u32 s37, {S-LA}"); A("s_cbranch_scc1 L_nokick"); A("s_barrier"); A("L_nokick:")
    A("s_cmp_eq_u32 s42, 0"); A("s_cbranch_scc1 L_loop")
    A("s_mov_b32 s42, 0")
    A("s_waitcnt vmcnt(16)")
    for b in EXT:
        qk(b); softmax(); pv(b)
    stamp(3)
    A("s_branch L_loop")
    A("L_sdone:")
    stamp(4)
    for r in range(8): dpp("v_add_f32",AC0+r,AC0+r,AC0+r,"row_ror:8")
    A("s_mov_b32 s46, 0xff00ff00"); A("s_mov_b32 s47, 0xff00ff00")
    for r in range(4): A(f"v_cndmask_b32 v{AC0+r}, v{AC0+r}, v{AC1+r}, s[46:47]")
    A("s_lshl_b32 s43, s3, 10"); A(f"v_lshl_add_u32 v{t0}, v0, 4, s43")
    A(f"ds_write_b128 v{t0}, v[{AC0}:{AC0+3}] offset:1024")
    xrow("v_add_f32",vl,t2)
    A("s_lshl_b32 s43, s3, 3"); A(f"v_mov_b32 v{t0}, s43")
    A(f"v_mov_b32 v{s0}, v{vm}"); A(f"v_mov_b32 v{s1}, v{vl}")
    A("s_mov_b64 exec, 1")
    A(f"ds_write_b64 v{t0}, v[{s0}:{s1}] offset:640")
    A("s_waitcnt lgkmcnt(0)")
    A("s_barrier")
    write_stamps()
    A("s_endpgm")

    X=10; XL=24; M=38; AA=42; AB=50; T=58; NEG=70; P=74; BB=78; DD=94; XC=110; BF=111; W1=112; W2=168; WD=112; WO=176
    vL16=3
    A("L_helper:")
    A("s_setprio 3")
    A("s_lshr_b32 s62, s2, 5"); A("s_lshl_b32 s62, s62, 3"); A("s_and_b32 s43, s2, 7"); A("s_add_u32 s62, s62, s43"); A("s_lshl_b32 s62, s62, 2")
    A("s_bfe_u32 s43, s2, 0x20003"); A("s_add_u32 s62, s62, s43")
    A("v_lshrrev_b32 v4, 1, v0"); A("v_lshlrev_b32 v1, 1, v4")
    A("v_and_b32 v5, 1, v0"); A("v_lshlrev_b32 v2, 13, v4"); A("v_lshl_add_u32 v2, v5, 4, v2")
    A("v_mul_u32_u24 v6, 3584, v4"); A("v_lshl_add_u32 v6, v5, 4, v6")
    A(f"v_lshlrev_b32 v{vL16}, 4, v0")
    A("v_lshrrev_b32 v7, 4, v0"); A("v_lshl_add_u32 v4, v5, 2, v7"); A("v_lshlrev_b32 v4, 3, v4")
    for u in range(14): A(f"v_mov_b32 v{X+u}, 0")
    for r in range(4): A(f"v_mov_b32 v{NEG+r}, -1")
    A("s_waitcnt lgkmcnt(0)")
    srd(28,4,900); srd(32,10,448*8192); srd(36,26,hex(WSN))
    A("s_lshl_b32 s63, s62, 6")
    A(f"buffer_load_dword v5, v4, s[36:39], s63 offen offset:{QBUF+4} sc1")
    A("s_lshl_b32 s59, s60, 10")
    A(f"buffer_load_dwordx4 v[{P}:{P+3}], v{vL16}, s[36:39], s59 offen offset:{QBUF} sc1")
    for u in range(14): A(f"buffer_load_short_d16_hi v{X+u}, v1, s[28:31], 0 offen offset:{64*u}")
    A("s_lshl_b32 s43, s62, 5")
    for u in range(14):
        A(f"buffer_load_dwordx4 v[{W1+4*u}:{W1+4*u+3}], v2, s[32:35], s43 offen {WNT}")
        if u<13: A("s_add_u32 s43, s43, 0x40000")
    if b0: A("s_barrier")
    A("s_lshl_b32 s43, s2, 11"); A(f"s_add_u32 s58, s43, {INB1}")
    A("s_and_b32 s42, s2, 7"); A("s_mul_i32 s57, s42, 14"); A("s_add_u32 s57, s57, s60")
    A("s_cmp_gt_u32 s60, s42"); A("s_subb_u32 s57, s57, 0")
    A("s_add_u32 s43, s42, 8"); A("s_cmp_gt_u32 s60, s43"); A("s_subb_u32 s57, s57, 0")
    A("s_bfe_u32 s41, s2, 0x10003"); A("s_add_u32 s41, s41, 1")
    A("s_and_b32 s43, s60, 7"); A("s_cmp_eq_u32 s43, s42"); A("s_cselect_b32 s41, 0, s41"); A("s_cselect_b32 s57, 0, s57")
    A("s_lshl_b32 s56, s57, 12"); A(f"s_add_u32 s56, s56, {INB2}")
    A("s_lshl_b32 s55, s57, 11"); A(f"s_add_u32 s55, s55, {INB2F}")
    A("s_lshl_b32 s54, s60, 8"); A(f"s_add_u32 s54, s54, {TICK}")
    def clears(lbl):
        if 'C' in dbg: return
        A(f"buffer_store_dwordx4 v[{NEG}:{NEG+3}], v{vL16}, s[36:39], s58 offen sc1")
        A("s_mov_b64 exec, 0xff")
        A(f"buffer_store_dwordx4 v[{NEG}:{NEG+3}], v{vL16}, s[36:39], s58 offen offset:1024 sc1")
        A("s_mov_b64 exec, -1")
        A("s_cmp_lg_u32 s41, 2"); A(f"s_cbranch_scc1 {lbl}a")
        for k in range(4): A(f"buffer_store_dwordx4 v[{NEG}:{NEG+3}], v{vL16}, s[36:39], s56 offen offset:{1024*k} sc1")
        for k in range(2): A(f"buffer_store_dwordx4 v[{NEG}:{NEG+3}], v{vL16}, s[36:39], s55 offen offset:{1024*k} sc1")
        A(f"{lbl}a:")
        if DYN:
            A("s_cmp_lg_u32 s61, 0"); A(f"s_cbranch_scc1 {lbl}b")
            A(f"v_mov_b32 v{T+6}, 0")
            A("s_mov_b64 exec, 1")
            A(f"buffer_store_dword v{T+6}, v{T+6}, s[36:39], s54 offen sc1")
            A("s_mov_b64 exec, -1")
            A(f"{lbl}b:")
        A("s_waitcnt vmcnt(0)")
    masks(M,T)
    def allred(r,t):
        dpp("v_add_f32",r,r,r,"quad_perm:[2,3,0,1]"); dpp("v_add_f32",r,r,r,"row_ror:4"); dpp("v_add_f32",r,r,r,"row_ror:8")
        xrow("v_add_f32",r,t)
    A("s_waitcnt vmcnt(14)")
    A(f"v_add_f32 v{T}, v{X}, v{X+1}"); A(f"v_add_f32 v{T+1}, v{X+2}, v{X+3}")
    for u in range(4,14,2):
        A(f"v_add_f32 v{T}, v{T}, v{X+u}"); A(f"v_add_f32 v{T+1}, v{T+1}, v{X+u+1}")
    A(f"v_add_f32 v{T}, v{T}, v{T+1}")
    allred(T,T+1)
    A(f"v_mul_f32 v{T}, {f2h(1/448)}, v{T}")
    for u in range(14): A(f"v_sub_f32 v{XL+u}, v{X+u}, v{T}")
    A(f"v_mul_f32 v{T+1}, v{XL}, v{XL}"); A(f"v_mul_f32 v{T+2}, v{XL+1}, v{XL+1}")
    for u in range(2,14,2):
        A(f"v_fmac_f32 v{T+1}, v{XL+u}, v{XL+u}"); A(f"v_fmac_f32 v{T+2}, v{XL+u+1}, v{XL+u+1}")
    A(f"v_add_f32 v{T+1}, v{T+1}, v{T+2}")
    allred(T+1,T+2)
    A(f"v_mul_f32 v{T+1}, {f2h(1/448)}, v{T+1}")
    A(f"v_cvt_pk_bf16_f32 v{T+2}, v{T}, v{T+1}")
    A(f"v_lshlrev_b32 v{T}, 16, v{T+2}"); A(f"v_and_b32 v{T+1}, 0xffff0000, v{T+2}")
    A(f"v_add_f32 v{T+1}, {f2h(1e-5)}, v{T+1}")
    A(f"v_cvt_pk_bf16_f32 v{T+1}, v{T+1}, v{T+1}"); A(f"v_and_b32 v{T+1}, 0xffff0000, v{T+1}")
    A(f"v_sqrt_f32 v{T+1}, v{T+1}")
    A(f"v_cvt_pk_bf16_f32 v{T+1}, v{T+1}, v{T+1}"); A(f"v_and_b32 v{T+1}, 0xffff0000, v{T+1}")
    A(f"v_rcp_f32 v{T+1}, v{T+1}")
    for u in range(0,14,2):
        a,b=X+u,X+u+1
        A(f"v_sub_f32 v{a}, v{a}, v{T}"); A(f"v_sub_f32 v{b}, v{b}, v{T}")
        A(f"v_cvt_pk_bf16_f32 v{T+2}, v{a}, v{b}")
        A(f"v_lshlrev_b32 v{a}, 16, v{T+2}"); A(f"v_and_b32 v{b}, 0xffff0000, v{T+2}")
        A(f"v_mul_f32 v{a}, v{a}, v{T+1}"); A(f"v_mul_f32 v{b}, v{b}, v{T+1}")
        A(f"v_cvt_pk_bf16_f32 v{T+2}, v{a}, v{b}")
        A(f"v_lshlrev_b32 v{a}, 16, v{T+2}"); A(f"v_and_b32 v{b}, 0xffff0000, v{T+2}")
        A(f"v_and_b32 v{XL+u}, 0xffff, v{T+2}"); A(f"v_lshrrev_b32 v{XL+u+1}, 16, v{T+2}")
    def gemvA(W,a,younger=None):
        for u in range(14):
            if younger is not None: A(f"s_waitcnt vmcnt({younger+13-u})")
            for t in range(4):
                A(f"v_dot2_f32_bf16 v{a+2*t}, v{W+4*u+t}, v{XL+u}, "+("0" if u==0 else f"v{a+2*t}"))
                A(f"v_dot2_f32_bf16 v{a+2*t+1}, v{W+4*u+t}, v{X+u}, "+("0" if u==0 else f"v{a+2*t+1}"))
        merge4(a,a+2,a+4,a+6); merge4(a+1,a+3,a+5,a+7)
        for ctl in ("quad_perm:[2,3,0,1]","row_ror:4","row_ror:8"):
            dpp("v_add_f32",a,a,a,ctl); dpp("v_add_f32",a+1,a+1,a+1,ctl)
    gemvA(W1,AA,0)
    A(f"v_cvt_pk_bf16_f32 v{T}, v{AA}, v{AA+1}"); A(f"v_add_u32 v{T+1}, 1, v5")
    A(f"v_add_u32 v8, 1, v{P+1}"); A(f"v_add_u32 v9, 1, v{P+3}")
    A("s_mov_b32 exec_lo, 0x00030003"); A("s_mov_b32 exec_hi, 0x00030003")
    A(f"buffer_store_dwordx2 v[{T}:{T+1}], v4, s[36:39], s63 offen offset:{QBUF} sc1")
    A("s_mov_b64 exec, -1")
    stamp(1)
    srd(40+4,24,256)
    A("s_lshr_b32 s43, s62, 4"); A("s_lshl_b32 s43, s43, 4"); A(f"v_mov_b32 v{T+2}, s43"); A(f"v_mov_b32 v{T+3}, 1")
    A("s_lshl_b32 s43, s60, 4"); A(f"v_mov_b32 v{T+4}, s43")
    A(f"buffer_load_dwordx4 v[{P}:{P+3}], v{vL16}, s[36:39], s59 offen offset:{QBUF} sc1")
    A("s_waitcnt vmcnt(0)")
    def arrive(lbl):
        A("s_cmp_lg_u32 s52, 0"); A(f"s_cbranch_scc1 {lbl}")
        A("s_mov_b32 s52, 1")
        clears(lbl)
        A("s_mov_b64 exec, 1")
        if 'A' not in dbg: A(f"buffer_atomic_add v{T+3}, v{T+2}, s[44:47], 0 offen")
        A("s_mov_b64 exec, -1")
        A(f"{lbl}:")
    A("s_mov_b32 s53, 0"); A("s_mov_b32 s52, 0")
    A("L_qpoll:")
    A(f"v_cmp_ne_u32 vcc, v8, v{P+1}"); A(f"v_cmp_ne_u32 s[48:49], v9, v{P+3}")
    A("s_or_b64 vcc, vcc, s[48:49]")
    A("s_cbranch_vccz L_qok")
    A("s_add_u32 s53, s53, 1")
    A("s_and_b32 s43, s53, 7"); A("s_cbranch_scc1 L_qld")
    A(f"s_cmp_ge_u32 s53, {SPIN}"); A("s_cbranch_scc1 L_end")
    arrive("L_arr1")
    A(f"buffer_load_dword v{T+5}, v{T+4}, s[44:47], 0 offen sc1"); A("s_waitcnt vmcnt(0)")
    A(f"v_cmp_gt_u32 vcc, 16, v{T+5}")
    A("s_cbranch_vccnz L_qld")
    A(f"buffer_load_dwordx4 v[{P}:{P+3}], v{vL16}, s[36:39], s59 offen offset:{QBUF} sc1"); A("s_waitcnt vmcnt(0)")
    A("s_branch L_qok")
    A("L_qld:")
    A(f"buffer_load_dwordx4 v[{P}:{P+3}], v{vL16}, s[36:39], s59 offen offset:{QBUF} sc1"); A("s_waitcnt vmcnt(0)")
    A("s_branch L_qpoll")
    A("L_qok:")
    A(f"v_mov_b32 v{P+1}, v{P+2}"); A(f"v_lshlrev_b32 v{T}, 3, v0")
    A(f"ds_write_b64 v{T}, v[{P}:{P+1}]")
    A("s_waitcnt lgkmcnt(0)")
    stamp(2)
    A("s_barrier")
    arrive("L_arr2")
    A("v_bfe_u32 v4, v0, 3, 1"); A("v_lshlrev_b32 v4, 5, v4"); A("v_lshrrev_b32 v7, 4, v0"); A("v_lshl_add_u32 v4, v7, 3, v4")
    A("v_and_b32 v5, 7, v0"); A("v_add_u32 v4, v4, v5")
    A("v_and_b32 v5, 15, v0"); A("v_lshlrev_b32 v5, 4, v5")
    A("s_mov_b32 s50, 0xff00ff00"); A("s_mov_b32 s51, 0xff00ff00")
    def rowloads(W,voff,srdr,soffs,flags):
        for cb in range(4):
            if cb==3: A("s_mov_b32 exec_lo, 0x00ff00ff"); A("s_mov_b32 exec_hi, 0x00ff00ff")
            for u in range(4):
                sg,im=soffs[u]
                A(f"buffer_load_dwordx4 v[{W+16*u+4*cb}:{W+16*u+4*cb+3}], v{voff}, {srdr}, {sg} offen offset:{im+256*cb} {flags}")
        A("s_mov_b64 exec, -1")
    def gemvB(W,srcs):
        for u,(r,k) in enumerate(srcs):
            for t in range(4): dpp("v_and_b32",BB+4*u+t,r,M+t,f"quad_perm:[{k},{k},{k},{k}]")
        for u in range(4):
            for cb in range(4):
                A(f"v_mfma_f32_16x16x32_bf16 v[{DD+4*cb}:{DD+4*cb+3}], v[{W+16*u+4*cb}:{W+16*u+4*cb+3}], v[{BB+4*u}:{BB+4*u+3}], "+("0" if u==0 else f"v[{DD+4*cb}:{DD+4*cb+3}]"))
    def scatter(voff,sbase,sbase2):
        for half in range(2):
            d=DD+8*half
            for r in range(4): A(f"v_cndmask_b32 v{d+r}, v{d+r}, v{d+4+r}, s[50:51]")
            for r in range(4): A(f"v_min_u32 v{d+r}, -2, v{d+r}")
            if half: A("s_mov_b32 exec_hi, 0x00ff00ff")
            A(f"buffer_store_dwordx4 v[{d}:{d+3}], v{voff}, s[36:39], {sbase2 if half else sbase} offen sc1")
        A("s_mov_b64 exec, -1")
    if 'F' in dbg: A("s_branch L_noffn")
    A("s_cmp_lg_u32 s41, 1"); A("s_cbranch_scc1 L_noffn")
    srd(32,16,448*3584)
    A("s_lshl_b32 s43, s57, 5")
    for u in range(14):
        A(f"buffer_load_dwordx4 v[{W1+4*u}:{W1+4*u+3}], v6, s[32:35], s43 offen {WNT}")
        if u<13: A(f"s_add_u32 s43, s43, {32*3584}")
    srd(32,18,448*3584)
    A("s_lshl_b32 s43, s57, 5")
    for u in range(14):
        A(f"buffer_load_dwordx4 v[{W2+4*u}:{W2+4*u+3}], v6, s[32:35], s43 offen {WNT}")
        if u<13: A(f"s_add_u32 s43, s43, {32*3584}")
    A("s_waitcnt vmcnt(14)")
    gemvA(W1,AA)
    A("s_waitcnt vmcnt(0)")
    gemvA(W2,AB)
    srd(32,20,1792*896)
    A("v_mul_u32_u24 v8, 1792, v7"); A("v_add_u32 v8, v8, v5")
    A(f"s_mul_i32 s43, s57, {16*896}"); A(f"s_add_u32 s52, s43, {8*896}")
    rowloads(WD,8,"s[32:35]",[("s43",0),("s43",896),("s52",0),("s52",896)],NT)
    A(f"v_cvt_pk_bf16_f32 v{T}, v{AA}, v{AA+1}"); A(f"v_cvt_pk_bf16_f32 v{T+1}, v{AB}, v{AB+1}")
    A(f"v_lshlrev_b32 v{AA}, 16, v{T}"); A(f"v_and_b32 v{AA+1}, 0xffff0000, v{T}")
    A(f"v_lshlrev_b32 v{AB}, 16, v{T+1}"); A(f"v_and_b32 v{AB+1}, 0xffff0000, v{T+1}")
    k0=math.sqrt(2/math.pi); k1=0.044715
    A(f"s_mov_b32 s48, {f2h(k1)}")
    for e in range(2):
        g=AA+e; t=T+2+e
        A(f"v_mul_f32 v{t}, v{g}, v{g}"); A(f"v_mul_f32 v{t}, v{t}, v{g}")
        A(f"v_fma_f32 v{t}, s48, v{t}, v{g}")
        A(f"v_mul_f32 v{t}, {f2h(-2*k0*math.log2(math.e))}, v{t}")
        A(f"v_exp_f32 v{t}, v{t}"); A(f"v_add_f32 v{t}, 1.0, v{t}"); A(f"v_rcp_f32 v{t}, v{t}")
        A(f"v_mul_f32 v{g}, v{g}, v{t}")
    A(f"v_cvt_pk_bf16_f32 v{T}, v{AA}, v{AA+1}")
    A(f"v_lshlrev_b32 v{AA}, 16, v{T}"); A(f"v_and_b32 v{AA+1}, 0xffff0000, v{T}")
    A(f"v_mul_f32 v{AA}, v{AA}, v{AB}"); A(f"v_mul_f32 v{AA+1}, v{AA+1}, v{AB+1}")
    A(f"v_cvt_pk_bf16_f32 v{AA}, v{AA}, v{AA}"); A(f"v_cvt_pk_bf16_f32 v{AA+1}, v{AA+1}, v{AA+1}")
    A("s_waitcnt vmcnt(0)")
    gemvB(WD,[(AA,0),(AA+1,0),(AA,1),(AA+1,1)])
    A("L_noffn:")
    stamp(3)
    A("s_barrier")
    if 'A' in dbg: A("s_branch L_aok")
    A("s_mov_b32 s53, 0")
    A("L_apoll:")
    A(f"buffer_load_dword v{T}, v{vL16}, s[44:47], 0 offen sc1"); A("s_waitcnt vmcnt(0)")
    A(f"v_cmp_gt_u32 vcc, 16, v{T}")
    A("s_and_b32 s43, vcc_lo, 0xffff"); A("s_cbranch_scc0 L_aok")
    A("s_sleep 32")
    A("s_add_u32 s53, s53, 1"); A(f"s_cmp_ge_u32 s53, {SPIN}"); A("s_cbranch_scc1 L_end")
    A("s_branch L_apoll")
    A("L_aok:")
    if 'F' in dbg: A("s_branch L_nored1")
    A("s_cmp_lg_u32 s41, 1"); A("s_cbranch_scc1 L_noffn2")
    A("v_lshlrev_b32 v8, 11, v4")
    A("s_lshl_b32 s43, s57, 4"); A(f"s_add_u32 s43, s43, {INB2F}"); A(f"s_add_u32 s52, s43, {64*2048}")
    scatter(8,"s43","s52")
    A("L_noffn2:")
    def red64(a):
        merge4(a,a+1,a+2,a+3)
        for ctl in ("row_ror:8","row_ror:4","row_ror:2","row_ror:1"): dpp("v_add_f32",a,a,a,ctl)
    def anyneg(rs,t):
        A(f"v_max3_u32 v{t}, v{rs[0]}, v{rs[1]}, v{rs[2]}")
        rs=rs[3:]
        while len(rs)>=2:
            A(f"v_max3_u32 v{t}, v{t}, v{rs[0]}, v{rs[1]}"); rs=rs[2:]
        if rs: A(f"v_max_u32 v{t}, v{t}, v{rs[0]}")
        A(f"v_cmp_eq_u32 vcc, -1, v{t}")
    A("s_cmp_lg_u32 s41, 2"); A("s_cbranch_scc1 L_nored1")
    A("s_lshr_b32 s43, s57, 3"); A("s_lshl_b32 s43, s43, 5"); A("s_and_b32 s52, s57, 7"); A("s_add_u32 s43, s43, s52"); A("s_lshl_b32 s43, s43, 1")
    A("v_lshlrev_b32 v9, 4, v7"); A("v_add_u32 v9, s43, v9")
    A(f"v_mov_b32 v{XC}, 0")
    A(f"buffer_load_short_d16_hi v{XC}, v9, s[28:31], 0 offen")
    for r in range(4): A(f"v_mov_b32 v{AB+r}, 0")
    A("s_mov_b32 s53, 0")
    A("L_fpoll:")
    A(f"buffer_load_dwordx4 v[{AA}:{AA+3}], v{vL16}, s[36:39], s55 offen sc1")
    A("s_mov_b32 exec_hi, 0x0000ffff")
    A(f"buffer_load_dwordx4 v[{AB}:{AB+3}], v{vL16}, s[36:39], s55 offen offset:1024 sc1")
    A("s_mov_b64 exec, -1")
    A("s_waitcnt vmcnt(0)")
    anyneg([AA,AA+1,AA+2,AA+3,AB,AB+1,AB+2,AB+3],T)
    A("s_cbranch_vccz L_fok")
    A("s_sleep 32")
    A("s_add_u32 s53, s53, 1"); A(f"s_cmp_ge_u32 s53, {SPIN}"); A("s_cbranch_scc1 L_end")
    A("s_branch L_fpoll")
    A("L_fok:")
    for r in range(4): A(f"v_add_f32 v{AA+r}, v{AA+r}, v{AB+r}")
    red64(AA)
    A(f"v_cvt_pk_bf16_f32 v{BF}, v{AA}, v{AA}"); A(f"v_and_b32 v{BF}, 0xffff0000, v{BF}")
    A("L_nored1:")
    srd(28,22,900)
    srd(32,12,4096*896)
    A("v_mul_u32_u24 v8, 7168, v7"); A("v_add_u32 v8, v8, v5")
    A("s_lshl_b32 s43, s60, 8"); A("s_bfe_u32 s52, s61, 0x10001"); A("s_lshl_b32 s52, s52, 7"); A("s_add_u32 s43, s43, s52")
    A("s_lshr_b32 s52, s61, 2"); A("s_lshl_b32 s52, s52, 5"); A("s_add_u32 s43, s43, s52")
    A("s_and_b32 s52, s61, 1"); A("s_lshl_b32 s52, s52, 2"); A("s_add_u32 s43, s43, s52"); A("s_mul_i32 s49, s43, 896")
    wol=lambda: rowloads(WO,8,"s[32:35]",[("s49",896*u) for u in range(4)],NT)
    if not latewo: wol()
    A("v_lshlrev_b32 v4, 12, v4")
    A("v_lshrrev_b32 v5, 2, v0"); A("v_and_b32 v6, 3, v0"); A("v_lshlrev_b32 v6, 4, v6"); A("v_lshl_add_u32 v6, v5, 11, v6")
    A("v_lshlrev_b32 v5, 3, v5")
    A("v_lshlrev_b32 v2, 11, v0")
    A("s_lshl_b32 s43, s60, 15"); A(f"s_add_u32 s43, s43, {INB1}"); A("s_lshl_b32 s52, s61, 6"); A("s_add_u32 s59, s43, s52")
    A("s_lshl_b32 s52, s61, 3"); A("s_add_u32 s63, s43, s52")
    A("s_lshl_b32 s43, s2, 4"); A(f"s_add_u32 s55, s43, {INB2}"); A(f"s_add_u32 s48, s55, {64*4096}")
    A("v_mov_b32 v1, 0")
    stamp(4)
    if DYN:
        TK=240
        A("s_mov_b64 exec, 1")
        A("s_waitcnt vmcnt(0)")
        A("s_barrier")
        def atomic(i):
            A(f"v_mov_b32 v{TK+i}, 1")
            A(f"buffer_atomic_add v{TK+i}, v1, s[36:39], s54 offen sc0")
        for i in range(LA): atomic(i)
        A("s_mov_b32 s53, 0"); A("s_mov_b32 s52, 0")
        A("L_tloop:")
        per=LA*2//math.gcd(LA,2)
        par0=(S-extras-RT)%2
        for q in range(per):
            i=q%LA
            A(f"s_waitcnt vmcnt({LA-1})")
            A(f"ds_write_b32 v1, v{TK+i} offset:{512+4*((q+par0)%2)}")
            A(f"v_readfirstlane_b32 s43, v{TK+i}")
            A("s_waitcnt lgkmcnt(0)")
            atomic(i)
            A("s_barrier")
            A("s_add_u32 s52, s52, 1"); A(f"s_cmp_ge_u32 s52, {1200-S+1}"); A(f"s_cselect_b32 s43, {POOL}, s43")
            A(f"s_cmp_ge_u32 s43, {POOL}"); A("s_addc_u32 s53, s53, 0")
            A(f"s_cmp_ge_u32 s53, {RT}"); A("s_cbranch_scc1 L_tdone")
        A("s_branch L_tloop")
        A("L_tdone:")
        A("s_mov_b64 exec, -1")
    A("s_barrier")
    stamp(5)
    O=AA; ML=T
    for w in range(4): A(f"ds_read_b128 v[{O+4*w}:{O+4*w+3}], v{vL16} offset:{1024+1024*w}")
    A(f"ds_read_b128 v[{ML}:{ML+3}], v1 offset:640"); A(f"ds_read_b128 v[{ML+4}:{ML+7}], v1 offset:656")
    if latewo: wol()
    A("s_waitcnt lgkmcnt(0)")
    A(f"v_max3_f32 v{P}, v{ML}, v{ML+2}, v{ML+4}"); A(f"v_max_f32 v{P}, v{P}, v{ML+6}")
    for w in range(4): A(f"v_sub_f32 v{ML+2*w}, v{ML+2*w}, v{P}")
    for w in range(4): A(f"v_mul_f32 v{ML+2*w}, s40, v{ML+2*w}")
    for w in range(4): A(f"v_exp_f32 v{ML+2*w}, v{ML+2*w}")
    A(f"v_mul_f32 v{P+1}, v{ML}, v{ML+1}")
    for r in range(4): A(f"v_mul_f32 v{O+r}, v{ML}, v{O+r}")
    for w in range(1,4):
        for r in range(4): A(f"v_fmac_f32 v{O+r}, v{ML+2*w}, v{O+4*w+r}")
        A(f"v_fmac_f32 v{P+1}, v{ML+2*w}, v{ML+2*w+1}")
    for r in range(4): A(f"v_min_u32 v{O+r}, -2, v{O+r}")
    A(f"buffer_store_dwordx4 v[{O}:{O+3}], v6, s[36:39], s59 offen sc1")
    A(f"v_min_u32 v{P}, -2, v{P}"); A(f"v_min_u32 v{P+1}, -2, v{P+1}")
    A("s_mov_b64 exec, 0xffff")
    A(f"buffer_store_dwordx2 v[{P}:{P+1}], v2, s[36:39], s63 offen offset:1024 sc1")
    A("s_mov_b64 exec, -1")
    A("s_mov_b32 s53, 0")
    O=AB
    A("L_poll1:")
    A(f"buffer_load_dwordx4 v[{O}:{O+3}], v{vL16}, s[36:39], s58 offen sc1")
    A(f"buffer_load_dwordx2 v[{O+4}:{O+5}], v5, s[36:39], s58 offen offset:1024 sc1")
    A("s_add_u32 s53, s53, 1"); A(f"s_cmp_ge_u32 s53, {SPIN}"); A("s_cbranch_scc1 L_end")
    A("s_waitcnt vmcnt(0)")
    anyneg([O,O+1,O+2,O+3,O+4,O+5],T)
    A("s_cbranch_vccnz L_poll1")
    stamp(6)
    dpp("v_max_f32",T,O+4,O+4,"row_ror:4"); dpp("v_max_f32",T,T,T,"row_ror:8"); xrow("v_max_f32",T,T+1)
    A(f"v_sub_f32 v{T}, v{O+4}, v{T}"); A(f"v_mul_f32 v{T}, s40, v{T}"); A(f"v_exp_f32 v{T}, v{T}")
    for r in range(4): A(f"v_mul_f32 v{O+r}, v{O+r}, v{T}")
    A(f"v_mul_f32 v{O+5}, v{O+5}, v{T}")
    merge4(O,O+1,O+2,O+3)
    xrow("v_add_f32",O+5,T+1)
    for ctl in ("row_ror:4","row_ror:8"):
        dpp("v_add_f32",O+5,O+5,O+5,ctl); dpp("v_add_f32",O,O,O,ctl)
    A(f"v_rcp_f32 v{O+5}, v{O+5}"); A(f"v_mul_f32 v{O}, v{O}, v{O+5}")
    A(f"v_cvt_pk_bf16_f32 v{O}, v{O}, v{O}")
    gemvB(WO,[(O,0),(O,1),(O,2),(O,3)]); scatter(4,"s55","s48")
    A("s_cmp_lg_u32 s41, 2"); A("s_cbranch_scc1 L_hend")
    A("s_mov_b32 s53, 0")
    O=AA
    A("L_poll2:")
    for k in range(4): A(f"buffer_load_dwordx4 v[{O+4*k}:{O+4*k+3}], v{vL16}, s[36:39], s56 offen offset:{1024*k} sc1")
    A("s_add_u32 s53, s53, 1"); A(f"s_cmp_ge_u32 s53, {SPIN}"); A("s_cbranch_scc1 L_end")
    A("s_waitcnt vmcnt(0)")
    anyneg([O+k for k in range(16)],T)
    A("s_cbranch_vccnz L_poll2")
    for r in range(4):
        A(f"v_add_f32 v{O+r}, v{O+r}, v{O+4+r}"); A(f"v_add_f32 v{O+8+r}, v{O+8+r}, v{O+12+r}")
    for r in range(4): A(f"v_add_f32 v{O+r}, v{O+r}, v{O+8+r}")
    red64(O)
    A(f"v_cvt_pk_bf16_f32 v{O}, v{O}, v{O}"); A(f"v_and_b32 v{O}, 0xffff0000, v{O}")
    A(f"v_add_f32 v{O}, v{XC}, v{O}")
    A(f"v_cvt_pk_bf16_f32 v{O}, v{O}, v{O}"); A(f"v_and_b32 v{O}, 0xffff0000, v{O}")
    A(f"v_add_f32 v{O}, v{O}, v{BF}")
    A(f"v_cvt_pk_bf16_f32 v{O}, v{O}, v{O}")
    A("s_mov_b32 exec_lo, 0x00010001"); A("s_mov_b32 exec_hi, 0x00010001")
    A(f"buffer_store_short v{O}, v9, s[28:31], 0 offen")
    A("L_hend:")
    stamp(7)
    write_stamps()
    A("L_end:")
    A("s_endpgm")
    A(f""".section .rodata,"a"
.p2align 6
.amdhsa_kernel {NAME}_kernel
  .amdhsa_next_free_vgpr 256
  .amdhsa_next_free_sgpr 96
  .amdhsa_accum_offset 256
  .amdhsa_group_segment_fixed_size 0
  .amdhsa_kernarg_size 96
  .amdhsa_user_sgpr_count 2
  .amdhsa_user_sgpr_kernarg_segment_ptr 1
  .amdhsa_system_sgpr_workgroup_id_x 1
.end_amdhsa_kernel""")
    body=pad(L)
    return "\n".join(body)+"\n"

if __name__=='__main__':
    kw={}
    out=sys.argv[1]
    for t in sys.argv[2:]:
        k,v=t.split('=')
        if k in('S','LA','extras'): v=int(v)
        elif k in('stamps','latewo'): v=bool(int(v))
        else: v=v.replace('_',' ')
        kw[k]=v
    open(out,'w').write(gen(**kw))
```

```python
import struct, sys, math
from asmlib import pad
NAME='parallel_sum__mha_block_cached__geglu_ffn__decode'
def f2h(x): return '0x%08x'%struct.unpack('<I',struct.pack('<f',x))[0]
C_SC=f2h(math.log2(math.e)/16)
QBUF=0x0; INB1=0x10000; INB2=0x100000; INB2F=0x180000; TICK=0x1C0000; WSN=0x200000
RB=16384
SPIN=1<<17

def gen(S=64, NT='nt', WNT='nt', stamps=False, LA=1, latewo=False, extras=None, header=True, RT=1, thr=None, pthr=None, b0=1, dbg='', MID=28, KNT=None, VNT=None):
    L=[]; A=L.append
    DYN = S<64
    POOL=(64-S)*16
    KNT = NT if KNT is None else KNT.replace('none','')
    VNT = NT if VNT is None else VNT.replace('none','')
    WNT = WNT.replace('none','')
    if extras is None: extras=6-RT
    if thr is None: thr=4+(RT-1)*8
    if pthr is None: pthr=thr
    st=[0]
    def stamp(k):
        if stamps: A(f"s_memrealtime s[{64+2*k}:{65+2*k}]")
    def srd(b,p,n):
        A(f"s_mov_b32 s{b}, s{p}"); A(f"s_mov_b32 s{b+1}, s{p+1}"); A(f"s_mov_b32 s{b+2}, {n}"); A(f"s_mov_b32 s{b+3}, 0x00020000")
    def write_stamps():
        if not stamps: return
        A("s_waitcnt lgkmcnt(0)")
        A("s_mov_b32 s80, s26"); A("s_mov_b32 s81, s27"); A("s_mov_b32 s82, 0x40000000"); A("s_mov_b32 s83, 0x00020000")
        A("s_mul_i32 s84, s2, 5"); A("s_add_u32 s84, s84, s3"); A("s_lshl_b32 s84, s84, 6"); A("s_add_u32 s84, s84, 0x20000000")
        A("s_mov_b64 exec, 1"); A("v_mov_b32 v1, 0")
        for k in range(4):
            for i in range(4): A(f"v_mov_b32 v{4+i}, s{64+4*k+i}")
            A(f"buffer_store_dwordx4 v[4:7], v1, s[80:83], s84 offen offset:{16*k}")
            A("s_nop 1")
        A("s_waitcnt vmcnt(0)")
    def masks(b, tmp):
        A(f"v_and_b32 v{tmp}, 1, v0"); A(f"v_cmp_eq_u32 vcc, 1, v{tmp}")
        A(f"v_mov_b32 v{tmp}, 0xffff"); A(f"v_mov_b32 v{tmp+1}, 0xffff0000")
        A(f"v_cndmask_b32 v{tmp}, v{tmp}, v{tmp+1}, vcc")
        A(f"v_bfe_u32 v{tmp+1}, v0, 1, 2")
        for t in range(4):
            A(f"v_cmp_eq_u32 vcc, {t}, v{tmp+1}")
            A(f"v_cndmask_b32 v{b+t}, 0, v{tmp}, vcc")
    def dpp(op,d,a,b,ctl): A(f"{op}_dpp v{d}, v{a}, v{b} {ctl} row_mask:0xf bank_mask:0xf")
    def xrow(op,r,t):
        A(f"v_mov_b32 v{t}, v{r}"); A(f"v_permlane16_swap_b32 v{r}, v{t}"); A(f"{op} v{r}, v{r}, v{t}")
        A(f"v_mov_b32 v{t}, v{r}"); A(f"v_permlane32_swap_b32 v{r}, v{t}"); A(f"{op} v{r}, v{r}, v{t}")
    def merge4(a,b,c,d):
        A(f"v_permlane32_swap_b32 v{a}, v{c}"); A(f"v_permlane32_swap_b32 v{b}, v{d}")
        A(f"v_add_f32 v{a}, v{a}, v{c}"); A(f"v_add_f32 v{b}, v{b}, v{d}")
        A(f"v_permlane16_swap_b32 v{a}, v{b}"); A(f"v_add_f32 v{a}, v{a}, v{b}")

    if header:
        A("; decode block: x + attention(LN(x)) @ wo + GEGLU-FFN(LN(x)); one workgroup per CU, 4 streaming waves + 1 helper wave")
        A("; @launch grid=(256,1,1) block=(320,1,1) lds=8192")
    A('.amdgcn_target "amdgcn-amd-amdhsa--gfx950"')
    A(".text"); A(f".globl {NAME}_kernel"); A(".p2align 8"); A(f".type {NAME}_kernel,@function"); A(f"{NAME}_kernel:")
    if stamps:
        for k in range(1,8): A(f"s_mov_b64 s[{64+2*k}:{65+2*k}], 0")
    stamp(0)
    A("s_cmp_ge_u32 s2, 256"); A("s_cbranch_scc1 L_end")
    A("s_load_dwordx16 s[4:19], s[0:1], 0")
    A("s_load_dwordx8 s[20:27], s[0:1], 64")
    A("v_lshrrev_b32 v1, 6, v0"); A("v_and_b32 v0, 63, v0"); A("v_readfirstlane_b32 s3, v1")
    A("s_lshr_b32 s60, s2, 4"); A("s_and_b32 s61, s2, 15")
    A(f"s_mov_b32 s40, {C_SC}")
    A("s_cmp_eq_u32 s3, 4"); A("s_cbranch_scc1 L_helper")

    vK,vV,vT=1,2,3; M=4; SEL=8; vm=9; vl=10; D=12; AC0=16; AC1=20; B0=24; B1=28; Q=32
    s0,s1,t0,t1,t2=48,49,50,51,52
    RING=[56+32*i for i in range(RT)]; EXT=[56+32*(RT+i) for i in range(extras)]
    A("v_and_b32 v1, 7, v0"); A("v_lshlrev_b32 v1, 9, v1")
    A("v_bfe_u32 v2, v0, 3, 1"); A("v_lshl_add_u32 v1, v2, 6, v1")
    A("v_lshrrev_b32 v3, 4, v0"); A("v_lshl_add_u32 v1, v3, 4, v1")
    A("v_bfe_u32 v2, v0, 4, 1"); A("v_lshlrev_b32 v2, 11, v2")
    A("v_lshrrev_b32 v3, 5, v0"); A("v_lshl_add_u32 v2, v3, 9, v2")
    A("v_and_b32 v3, 15, v0"); A("v_lshl_add_u32 v2, v3, 4, v2")
    A("s_lshl_b32 s41, s60, 24"); A("s_lshl_b32 s43, s3, 12"); A("s_add_u32 s41, s41, s43")
    A(f"s_mul_i32 s36, s61, {S*RB}"); A("s_add_u32 s36, s36, s41")
    A(f"s_add_u32 s41, s41, {16*S*RB}")
    A("s_waitcnt lgkmcnt(0)")
    srd(28,6,'0x10000000'); srd(32,8,'0x10000000')
    def kloads(b):
        for t in range(4): A(f"buffer_load_dwordx4 v[{b+4*t}:{b+4*t+3}], v{vK}, s[28:31], s36 offen offset:{128*t} {KNT}")
    def vloads(b):
        for u in range(4): A(f"buffer_load_dwordx4 v[{b+16+4*u}:{b+16+4*u+3}], v{vV}, s[32:35], s36 offen offset:{(u>>1)*1024+(u&1)*256} {VNT}")
    if b0==2: A("s_barrier")
    for n,b in enumerate(RING+EXT):
        if 8*n>pthr: A(f"s_waitcnt vmcnt({pthr})")
        kloads(b)
        if n==0:
            masks(M,t0)
            A(f"v_and_b32 v{t0}, 8, v0"); A(f"v_cmp_eq_u32 vcc, 8, v{t0}"); A(f"v_cndmask_b32 v{SEL}, 0, 1.0, vcc")
            A(f"v_mov_b32 v{vm}, 0xff7fffff"); A(f"v_mov_b32 v{vl}, 0")
            for r in range(8): A(f"v_mov_b32 v{AC0+r}, 0")
            A(f"v_and_b32 v{vT}, 1, v0"); A(f"v_lshlrev_b32 v{vT}, 6, v{vT}")
            A(f"v_lshrrev_b32 v{t0}, 4, v0"); A(f"v_lshl_add_u32 v{vT}, v{t0}, 4, v{vT}")
            if b0==1: A("s_barrier")
        if 8*n+4>pthr: A(f"s_waitcnt vmcnt({pthr})")
        vloads(b)
        A(f"s_add_u32 s36, s36, {RB}")
    A(f"s_mov_b32 s37, {RT+extras}"); A("s_mov_b32 s38, 1"); A("s_mov_b32 s39, 1"); A("s_mov_b32 s42, 1")
    stamp(1)
    A("s_barrier")
    for t in range(4): A(f"ds_read_b128 v[{Q+4*t}:{Q+4*t+3}], v{vT} offset:{128*t}")
    A(f"v_mov_b32 v{vT}, 0")
    A("s_waitcnt lgkmcnt(0)")
    stamp(2)
    uid=[0]
    def qk(b):
        for t in range(4):
            A(f"v_mfma_f32_16x16x32_bf16 v[{D}:{D+3}], v[{b+4*t}:{b+4*t+3}], v[{Q+4*t}:{Q+4*t+3}], "+("0" if t==0 else f"v[{D}:{D+3}]"))
    def softmax():
        uid[0]+=1; u=uid[0]
        A(f"v_permlane32_swap_b32 v{D}, v{D+1}"); A(f"v_permlane32_swap_b32 v{D+2}, v{D+3}")
        A(f"v_mov_b32_dpp v{t0}, v{D+1} quad_perm:[1,1,3,3] row_mask:0xf bank_mask:0xf")
        A(f"v_mov_b32_dpp v{t1}, v{D+3} quad_perm:[1,1,3,3] row_mask:0xf bank_mask:0xf")
        dpp("v_add_f32",s0,D,t0,"quad_perm:[0,0,2,2]"); dpp("v_add_f32",s1,D+2,t1,"quad_perm:[0,0,2,2]")
        A(f"v_cvt_pk_bf16_f32 v{t0}, v{s0}, v{s1}")
        A(f"v_lshlrev_b32 v{s0}, 16, v{t0}"); A(f"v_and_b32 v{s1}, 0xffff0000, v{t0}")
        A(f"v_max_f32 v{t1}, v{s0}, v{s1}")
        A(f"v_cmp_gt_f32 vcc, v{t1}, v{vm}")
        A(f"s_cbranch_vccz L_nomax{u}")
        xrow("v_max_f32",t1,t2)
        A(f"v_max_f32 v{t1}, v{t1}, v{vm}")
        A(f"v_sub_f32 v{t2}, v{vm}, v{t1}"); A(f"v_mul_f32 v{t2}, s40, v{t2}"); A(f"v_exp_f32 v{t2}, v{t2}")
        A(f"v_mov_b32 v{vm}, v{t1}")
        A(f"v_mul_f32 v{vl}, v{vl}, v{t2}")
        for r in range(8): A(f"v_mul_f32 v{AC0+r}, v{AC0+r}, v{t2}")
        A(f"L_nomax{u}:")
        A(f"v_sub_f32 v{s0}, v{s0}, v{vm}"); A(f"v_sub_f32 v{s1}, v{s1}, v{vm}")
        A(f"v_mul_f32 v{s0}, s40, v{s0}"); A(f"v_mul_f32 v{s1}, s40, v{s1}")
        A(f"v_exp_f32 v{s0}, v{s0}"); A(f"v_exp_f32 v{s1}, v{s1}")
        A(f"v_add_f32 v{vl}, v{vl}, v{s0}")
        A(f"v_cvt_pk_bf16_f32 v{t0}, v{s0}, v{s1}")
        A(f"v_add_f32 v{vl}, v{vl}, v{s1}")
        A(f"v_lshlrev_b32 v{t1}, 16, v{t0}"); A(f"v_and_b32 v{t2}, 0xffff0000, v{t0}")
        A(f"v_fma_f32 v{s0}, -v{t1}, v{SEL}, v{s0}"); A(f"v_fma_f32 v{s1}, -v{t2}, v{SEL}, v{s1}")
        A(f"v_cvt_pk_bf16_f32 v{t0}, v{s0}, v{s0}"); A(f"v_cvt_pk_bf16_f32 v{t1}, v{s1}, v{s1}")
        for t in range(4): A(f"v_and_b32 v{B0+t}, v{t0}, v{M+t}")
        for t in range(4): A(f"v_and_b32 v{B1+t}, v{t1}, v{M+t}")
    def pv(b):
        for u in range(4):
            ac=AC1 if (u&1) else AC0; bb=B1 if (u>>1) else B0
            A(f"v_mfma_f32_16x16x32_bf16 v[{ac}:{ac+3}], v[{b+16+4*u}:{b+16+4*u+3}], v[{bb}:{bb+3}], v[{ac}:{ac+3}]")
    A("L_loop:")
    for sl in range(2):
        b=RING[sl%RT]; fl=38+sl%RT
        A(f"s_cmp_eq_u32 s{fl}, 0"); A("s_cbranch_scc1 L_sdone")
        A(f"s_waitcnt vmcnt({thr})")
        qk(b)
        A(f"s_cmp_lt_u32 s37, {S}"); A(f"s_cbranch_scc1 L_st{sl}")
        if DYN:
            A("s_barrier")
            A(f"ds_read_b32 v{t0}, v{vT} offset:{512+4*sl}"); A("s_waitcnt lgkmcnt(0)")
            A(f"v_readfirstlane_b32 s43, v{t0}")
            A("s_cmp_ge_u32 s37, 1200"); A(f"s_cselect_b32 s43, {POOL}, s43")
            A(f"s_cmp_lt_u32 s43, {POOL}")
            A("s_cselect_b32 s30, 0x10000000, 0"); A("s_cselect_b32 s34, 0x10000000, 0"); A(f"s_cselect_b32 s{fl}, 1, 0")
            A(f"s_min_u32 s43, s43, {POOL-1}"); A("s_lshl_b32 s43, s43, 14"); A("s_add_u32 s36, s41, s43")
        else:
            A("s_mov_b32 s30, 0"); A("s_mov_b32 s34, 0"); A(f"s_mov_b32 s{fl}, 0"); A("s_mov_b32 s36, 0")
        A(f"L_st{sl}:")
        kloads(b)
        softmax()
        A(f"s_waitcnt vmcnt({thr})")
        pv(b)
        vloads(b)
        A(f"s_add_u32 s36, s36, {RB}"); A("s_add_u32 s37, s37, 1")
        if sl==(MID-1-extras-RT)%2:
            A(f"s_cmp_lg_u32 s37, {MID}"); A("s_cbranch_scc1 L_nomid"); A("s_barrier"); A("L_nomid:")
        if DYN and sl==(S-1-LA-extras-RT)%2:
            A(f"s_cmp_lg_u32 s37, {S-LA}"); A("s_cbranch_scc1 L_nokick"); A("s_barrier"); A("L_nokick:")
    A("s_cmp_eq_u32 s42, 0"); A("s_cbranch_scc1 L_loop")
    A("s_mov_b32 s42, 0")
    A("s_waitcnt vmcnt(16)")
    for b in EXT:
        qk(b); softmax(); pv(b)
    stamp(3)
    A("s_branch L_loop")
    A("L_sdone:")
    stamp(4)
    for r in range(8): dpp("v_add_f32",AC0+r,AC0+r,AC0+r,"row_ror:8")
    A("s_mov_b32 s46, 0xff00ff00"); A("s_mov_b32 s47, 0xff00ff00")
    for r in range(4): A(f"v_cndmask_b32 v{AC0+r}, v{AC0+r}, v{AC1+r}, s[46:47]")
    A("s_lshl_b32 s43, s3, 10"); A(f"v_lshl_add_u32 v{t0}, v0, 4, s43")
    A(f"ds_write_b128 v{t0}, v[{AC0}:{AC0+3}] offset:1024")
    xrow("v_add_f32",vl,t2)
    A("s_lshl_b32 s43, s3, 3"); A(f"v_mov_b32 v{t0}, s43")
    A(f"v_mov_b32 v{s0}, v{vm}"); A(f"v_mov_b32 v{s1}, v{vl}")
    A("s_mov_b64 exec, 1")
    A(f"ds_write_b64 v{t0}, v[{s0}:{s1}] offset:640")
    A("s_waitcnt lgkmcnt(0)")
    A("s_barrier")
    write_stamps()
    A("s_endpgm")

    X=10; XL=24; M=38; AA=42; AB=50; T=58; NEG=70; P=74; BB=78; DD=94; XC=110; BF=111; W1=112; W2=168; WD=112; WO=176
    vL16=3
    A("L_helper:")
    A("s_setprio 3")
    A("s_lshr_b32 s62, s2, 5"); A("s_lshl_b32 s62, s62, 3"); A("s_and_b32 s43, s2, 7"); A("s_add_u32 s62, s62, s43"); A("s_lshl_b32 s62, s62, 2")
    A("s_bfe_u32 s43, s2, 0x20003"); A("s_add_u32 s62, s62, s43")
    A("v_lshrrev_b32 v4, 1, v0"); A("v_lshlrev_b32 v1, 1, v4")
    A("v_and_b32 v5, 1, v0"); A("v_lshlrev_b32 v2, 13, v4"); A("v_lshl_add_u32 v2, v5, 4, v2")
    A("v_mul_u32_u24 v6, 3584, v4"); A("v_lshl_add_u32 v6, v5, 4, v6")
    A(f"v_lshlrev_b32 v{vL16}, 4, v0")
    A("v_lshrrev_b32 v7, 4, v0"); A("v_lshl_add_u32 v4, v5, 2, v7"); A("v_lshlrev_b32 v4, 3, v4")
    for u in range(14): A(f"v_mov_b32 v{X+u}, 0")
    for r in range(4): A(f"v_mov_b32 v{NEG+r}, -1")
    A("s_waitcnt lgkmcnt(0)")
    srd(28,4,900); srd(32,10,448*8192); srd(36,26,hex(WSN))
    A("s_lshl_b32 s63, s62, 6")
    A(f"buffer_load_dword v5, v4, s[36:39], s63 offen offset:{QBUF+4} sc1")
    A("s_lshl_b32 s59, s60, 10")
    A(f"buffer_load_dwordx4 v[{P}:{P+3}], v{vL16}, s[36:39], s59 offen offset:{QBUF} sc1")
    for u in range(14): A(f"buffer_load_short_d16_hi v{X+u}, v1, s[28:31], 0 offen offset:{64*u}")
    A("s_lshl_b32 s43, s62, 5")
    for u in range(14):
        A(f"buffer_load_dwordx4 v[{W1+4*u}:{W1+4*u+3}], v2, s[32:35], s43 offen {WNT}")
        if u<13: A("s_add_u32 s43, s43, 0x40000")
    if b0: A("s_barrier")
    A("s_lshl_b32 s43, s2, 11"); A(f"s_add_u32 s58, s43, {INB1}")
    A("s_and_b32 s42, s2, 7"); A("s_mul_i32 s57, s42, 14"); A("s_add_u32 s57, s57, s60")
    A("s_cmp_gt_u32 s60, s42"); A("s_subb_u32 s57, s57, 0")
    A("s_add_u32 s43, s42, 8"); A("s_cmp_gt_u32 s60, s43"); A("s_subb_u32 s57, s57, 0")
    A("s_bfe_u32 s41, s2, 0x10003"); A("s_add_u32 s41, s41, 1")
    A("s_and_b32 s43, s60, 7"); A("s_cmp_eq_u32 s43, s42"); A("s_cselect_b32 s41, 0, s41"); A("s_cselect_b32 s57, 0, s57")
    A("s_lshl_b32 s56, s57, 12"); A(f"s_add_u32 s56, s56, {INB2}")
    A("s_lshl_b32 s55, s57, 11"); A(f"s_add_u32 s55, s55, {INB2F}")
    A("s_lshl_b32 s54, s60, 8"); A(f"s_add_u32 s54, s54, {TICK}")
    def clears(lbl):
        if 'C' in dbg: return
        A(f"buffer_store_dwordx4 v[{NEG}:{NEG+3}], v{vL16}, s[36:39], s58 offen sc1")
        A("s_mov_b64 exec, 0xff")
        A(f"buffer_store_dwordx4 v[{NEG}:{NEG+3}], v{vL16}, s[36:39], s58 offen offset:1024 sc1")
        A("s_mov_b64 exec, -1")
        A("s_cmp_lg_u32 s41, 2"); A(f"s_cbranch_scc1 {lbl}a")
        for k in range(4): A(f"buffer_store_dwordx4 v[{NEG}:{NEG+3}], v{vL16}, s[36:39], s56 offen offset:{1024*k} sc1")
        for k in range(2): A(f"buffer_store_dwordx4 v[{NEG}:{NEG+3}], v{vL16}, s[36:39], s55 offen offset:{1024*k} sc1")
        A(f"{lbl}a:")
        if DYN:
            A("s_cmp_lg_u32 s61, 0"); A(f"s_cbranch_scc1 {lbl}b")
            A(f"v_mov_b32 v{T+6}, 0")
            A("s_mov_b64 exec, 1")
            A(f"buffer_store_dword v{T+6}, v{T+6}, s[36:39], s54 offen sc1")
            A("s_mov_b64 exec, -1")
            A(f"{lbl}b:")
        A("s_waitcnt vmcnt(0)")
    masks(M,T)
    def allred(r,t):
        dpp("v_add_f32",r,r,r,"quad_perm:[2,3,0,1]"); dpp("v_add_f32",r,r,r,"row_ror:4"); dpp("v_add_f32",r,r,r,"row_ror:8")
        xrow("v_add_f32",r,t)
    A("s_waitcnt vmcnt(14)")
    A(f"v_add_f32 v{T}, v{X}, v{X+1}"); A(f"v_add_f32 v{T+1}, v{X+2}, v{X+3}")
    for u in range(4,14,2):
        A(f"v_add_f32 v{T}, v{T}, v{X+u}"); A(f"v_add_f32 v{T+1}, v{T+1}, v{X+u+1}")
    A(f"v_add_f32 v{T}, v{T}, v{T+1}")
    allred(T,T+1)
    A(f"v_mul_f32 v{T}, {f2h(1/448)}, v{T}")
    for u in range(14): A(f"v_sub_f32 v{XL+u}, v{X+u}, v{T}")
    A(f"v_mul_f32 v{T+1}, v{XL}, v{XL}"); A(f"v_mul_f32 v{T+2}, v{XL+1}, v{XL+1}")
    for u in range(2,14,2):
        A(f"v_fmac_f32 v{T+1}, v{XL+u}, v{XL+u}"); A(f"v_fmac_f32 v{T+2}, v{XL+u+1}, v{XL+u+1}")
    A(f"v_add_f32 v{T+1}, v{T+1}, v{T+2}")
    allred(T+1,T+2)
    A(f"v_mul_f32 v{T+1}, {f2h(1/448)}, v{T+1}")
    A(f"v_cvt_pk_bf16_f32 v{T+2}, v{T}, v{T+1}")
    A(f"v_lshlrev_b32 v{T}, 16, v{T+2}"); A(f"v_and_b32 v{T+1}, 0xffff0000, v{T+2}")
    A(f"v_add_f32 v{T+1}, {f2h(1e-5)}, v{T+1}")
    A(f"v_cvt_pk_bf16_f32 v{T+1}, v{T+1}, v{T+1}"); A(f"v_and_b32 v{T+1}, 0xffff0000, v{T+1}")
    A(f"v_sqrt_f32 v{T+1}, v{T+1}")
    A(f"v_cvt_pk_bf16_f32 v{T+1}, v{T+1}, v{T+1}"); A(f"v_and_b32 v{T+1}, 0xffff0000, v{T+1}")
    A(f"v_rcp_f32 v{T+1}, v{T+1}")
    for u in range(0,14,2):
        a,b=X+u,X+u+1
        A(f"v_sub_f32 v{a}, v{a}, v{T}"); A(f"v_sub_f32 v{b}, v{b}, v{T}")
        A(f"v_cvt_pk_bf16_f32 v{T+2}, v{a}, v{b}")
        A(f"v_lshlrev_b32 v{a}, 16, v{T+2}"); A(f"v_and_b32 v{b}, 0xffff0000, v{T+2}")
        A(f"v_mul_f32 v{a}, v{a}, v{T+1}"); A(f"v_mul_f32 v{b}, v{b}, v{T+1}")
        A(f"v_cvt_pk_bf16_f32 v{T+2}, v{a}, v{b}")
        A(f"v_lshlrev_b32 v{a}, 16, v{T+2}"); A(f"v_and_b32 v{b}, 0xffff0000, v{T+2}")
        A(f"v_and_b32 v{XL+u}, 0xffff, v{T+2}"); A(f"v_lshrrev_b32 v{XL+u+1}, 16, v{T+2}")
    def gemvA(W,a,younger=None):
        for u in range(14):
            if younger is not None: A(f"s_waitcnt vmcnt({younger+13-u})")
            for t in range(4):
                A(f"v_dot2_f32_bf16 v{a+2*t}, v{W+4*u+t}, v{XL+u}, "+("0" if u==0 else f"v{a+2*t}"))
                A(f"v_dot2_f32_bf16 v{a+2*t+1}, v{W+4*u+t}, v{X+u}, "+("0" if u==0 else f"v{a+2*t+1}"))
        merge4(a,a+2,a+4,a+6); merge4(a+1,a+3,a+5,a+7)
        for ctl in ("quad_perm:[2,3,0,1]","row_ror:4","row_ror:8"):
            dpp("v_add_f32",a,a,a,ctl); dpp("v_add_f32",a+1,a+1,a+1,ctl)
    gemvA(W1,AA,0)
    A(f"v_cvt_pk_bf16_f32 v{T}, v{AA}, v{AA+1}"); A(f"v_add_u32 v{T+1}, 1, v5")
    A(f"v_add_u32 v8, 1, v{P+1}"); A(f"v_add_u32 v9, 1, v{P+3}")
    A("s_mov_b32 exec_lo, 0x00030003"); A("s_mov_b32 exec_hi, 0x00030003")
    A(f"buffer_store_dwordx2 v[{T}:{T+1}], v4, s[36:39], s63 offen offset:{QBUF} sc1")
    A("s_mov_b64 exec, -1")
    stamp(1)
    srd(40+4,24,256)
    A("s_lshr_b32 s43, s62, 4"); A("s_lshl_b32 s43, s43, 4"); A(f"v_mov_b32 v{T+2}, s43"); A(f"v_mov_b32 v{T+3}, 1")
    A("s_lshl_b32 s43, s60, 4"); A(f"v_mov_b32 v{T+4}, s43")
    A(f"buffer_load_dwordx4 v[{P}:{P+3}], v{vL16}, s[36:39], s59 offen offset:{QBUF} sc1")
    A("s_waitcnt vmcnt(0)")
    def arrive(lbl):
        A("s_cmp_lg_u32 s52, 0"); A(f"s_cbranch_scc1 {lbl}")
        A("s_mov_b32 s52, 1")
        clears(lbl)
        A("s_mov_b64 exec, 1")
        if 'A' not in dbg: A(f"buffer_atomic_add v{T+3}, v{T+2}, s[44:47], 0 offen")
        A("s_mov_b64 exec, -1")
        A(f"{lbl}:")
    A("s_mov_b32 s53, 0"); A("s_mov_b32 s52, 0")
    A("L_qpoll:")
    A(f"v_cmp_ne_u32 vcc, v8, v{P+1}"); A(f"v_cmp_ne_u32 s[48:49], v9, v{P+3}")
    A("s_or_b64 vcc, vcc, s[48:49]")
    A("s_cbranch_vccz L_qok")
    A("s_add_u32 s53, s53, 1")
    A("s_and_b32 s43, s53, 7"); A("s_cbranch_scc1 L_qld")
    A(f"s_cmp_ge_u32 s53, {SPIN}"); A("s_cbranch_scc1 L_end")
    arrive("L_arr1")
    A(f"buffer_load_dword v{T+5}, v{T+4}, s[44:47], 0 offen sc1"); A("s_waitcnt vmcnt(0)")
    A(f"v_cmp_gt_u32 vcc, 16, v{T+5}")
    A("s_cbranch_vccnz L_qld")
    A(f"buffer_load_dwordx4 v[{P}:{P+3}], v{vL16}, s[36:39], s59 offen offset:{QBUF} sc1"); A("s_waitcnt vmcnt(0)")
    A("s_branch L_qok")
    A("L_qld:")
    A(f"buffer_load_dwordx4 v[{P}:{P+3}], v{vL16}, s[36:39], s59 offen offset:{QBUF} sc1"); A("s_waitcnt vmcnt(0)")
    A("s_branch L_qpoll")
    A("L_qok:")
    A(f"v_mov_b32 v{P+1}, v{P+2}"); A(f"v_lshlrev_b32 v{T}, 3, v0")
    A(f"ds_write_b64 v{T}, v[{P}:{P+1}]")
    A("s_waitcnt lgkmcnt(0)")
    stamp(2)
    A("s_barrier")
    arrive("L_arr2")
    A("v_bfe_u32 v4, v0, 3, 1"); A("v_lshlrev_b32 v4, 5, v4"); A("v_lshrrev_b32 v7, 4, v0"); A("v_lshl_add_u32 v4, v7, 3, v4")
    A("v_and_b32 v5, 7, v0"); A("v_add_u32 v4, v4, v5")
    A("v_and_b32 v5, 15, v0"); A("v_lshlrev_b32 v5, 4, v5")
    A("s_mov_b32 s50, 0xff00ff00"); A("s_mov_b32 s51, 0xff00ff00")
    def rowloads(W,voff,srdr,soffs,flags):
        for cb in range(4):
            if cb==3: A("s_mov_b32 exec_lo, 0x00ff00ff"); A("s_mov_b32 exec_hi, 0x00ff00ff")
            for u in range(4):
                sg,im=soffs[u]
                A(f"buffer_load_dwordx4 v[{W+16*u+4*cb}:{W+16*u+4*cb+3}], v{voff}, {srdr}, {sg} offen offset:{im+256*cb} {flags}")
        A("s_mov_b64 exec, -1")
    def gemvB(W,srcs):
        for u,(r,k) in enumerate(srcs):
            for t in range(4): dpp("v_and_b32",BB+4*u+t,r,M+t,f"quad_perm:[{k},{k},{k},{k}]")
        for u in range(4):
            for cb in range(4):
                A(f"v_mfma_f32_16x16x32_bf16 v[{DD+4*cb}:{DD+4*cb+3}], v[{W+16*u+4*cb}:{W+16*u+4*cb+3}], v[{BB+4*u}:{BB+4*u+3}], "+("0" if u==0 else f"v[{DD+4*cb}:{DD+4*cb+3}]"))
    def scatter(voff,sbase,sbase2):
        for half in range(2):
            d=DD+8*half
            for r in range(4): A(f"v_cndmask_b32 v{d+r}, v{d+r}, v{d+4+r}, s[50:51]")
            for r in range(4): A(f"v_min_u32 v{d+r}, -2, v{d+r}")
            if half: A("s_mov_b32 exec_hi, 0x00ff00ff")
            A(f"buffer_store_dwordx4 v[{d}:{d+3}], v{voff}, s[36:39], {sbase2 if half else sbase} offen sc1")
        A("s_mov_b64 exec, -1")
    if 'F' in dbg: A("s_branch L_noffn")
    A("s_cmp_lg_u32 s41, 1"); A("s_cbranch_scc1 L_noffn")
    srd(32,16,448*3584)
    A("s_lshl_b32 s43, s57, 5")
    for u in range(14):
        A(f"buffer_load_dwordx4 v[{W1+4*u}:{W1+4*u+3}], v6, s[32:35], s43 offen {WNT}")
        if u<13: A(f"s_add_u32 s43, s43, {32*3584}")
    srd(32,18,448*3584)
    A("s_lshl_b32 s43, s57, 5")
    for u in range(14):
        A(f"buffer_load_dwordx4 v[{W2+4*u}:{W2+4*u+3}], v6, s[32:35], s43 offen {WNT}")
        if u<13: A(f"s_add_u32 s43, s43, {32*3584}")
    A("s_waitcnt vmcnt(14)")
    gemvA(W1,AA)
    A("s_waitcnt vmcnt(0)")
    gemvA(W2,AB)
    srd(32,20,1792*896)
    A("v_mul_u32_u24 v8, 1792, v7"); A("v_add_u32 v8, v8, v5")
    A(f"s_mul_i32 s43, s57, {16*896}"); A(f"s_add_u32 s52, s43, {8*896}")
    rowloads(WD,8,"s[32:35]",[("s43",0),("s43",896),("s52",0),("s52",896)],NT)
    A(f"v_cvt_pk_bf16_f32 v{T}, v{AA}, v{AA+1}"); A(f"v_cvt_pk_bf16_f32 v{T+1}, v{AB}, v{AB+1}")
    A(f"v_lshlrev_b32 v{AA}, 16, v{T}"); A(f"v_and_b32 v{AA+1}, 0xffff0000, v{T}")
    A(f"v_lshlrev_b32 v{AB}, 16, v{T+1}"); A(f"v_and_b32 v{AB+1}, 0xffff0000, v{T+1}")
    k0=math.sqrt(2/math.pi); k1=0.044715
    A(f"s_mov_b32 s48, {f2h(k1)}")
    for e in range(2):
        g=AA+e; t=T+2+e
        A(f"v_mul_f32 v{t}, v{g}, v{g}"); A(f"v_mul_f32 v{t}, v{t}, v{g}")
        A(f"v_fma_f32 v{t}, s48, v{t}, v{g}")
        A(f"v_mul_f32 v{t}, {f2h(-2*k0*math.log2(math.e))}, v{t}")
        A(f"v_exp_f32 v{t}, v{t}"); A(f"v_add_f32 v{t}, 1.0, v{t}"); A(f"v_rcp_f32 v{t}, v{t}")
        A(f"v_mul_f32 v{g}, v{g}, v{t}")
    A(f"v_cvt_pk_bf16_f32 v{T}, v{AA}, v{AA+1}")
    A(f"v_lshlrev_b32 v{AA}, 16, v{T}"); A(f"v_and_b32 v{AA+1}, 0xffff0000, v{T}")
    A(f"v_mul_f32 v{AA}, v{AA}, v{AB}"); A(f"v_mul_f32 v{AA+1}, v{AA+1}, v{AB+1}")
    A(f"v_cvt_pk_bf16_f32 v{AA}, v{AA}, v{AA}"); A(f"v_cvt_pk_bf16_f32 v{AA+1}, v{AA+1}, v{AA+1}")
    A("s_waitcnt vmcnt(0)")
    gemvB(WD,[(AA,0),(AA+1,0),(AA,1),(AA+1,1)])
    A("L_noffn:")
    stamp(3)
    A("s_barrier")
    if 'A' in dbg: A("s_branch L_aok")
    A("s_mov_b32 s53, 0")
    A("L_apoll:")
    A(f"buffer_load_dword v{T}, v{vL16}, s[44:47], 0 offen sc1"); A("s_waitcnt vmcnt(0)")
    A(f"v_cmp_gt_u32 vcc, 16, v{T}")
    A("s_and_b32 s43, vcc_lo, 0xffff"); A("s_cbranch_scc0 L_aok")
    A("s_sleep 32")
    A("s_add_u32 s53, s53, 1"); A(f"s_cmp_ge_u32 s53, {SPIN}"); A("s_cbranch_scc1 L_end")
    A("s_branch L_apoll")
    A("L_aok:")
    if 'F' in dbg: A("s_branch L_nored1")
    A("s_cmp_lg_u32 s41, 1"); A("s_cbranch_scc1 L_noffn2")
    A("v_lshlrev_b32 v8, 11, v4")
    A("s_lshl_b32 s43, s57, 4"); A(f"s_add_u32 s43, s43, {INB2F}"); A(f"s_add_u32 s52, s43, {64*2048}")
    scatter(8,"s43","s52")
    A("L_noffn2:")
    def red64(a):
        merge4(a,a+1,a+2,a+3)
        for ctl in ("row_ror:8","row_ror:4","row_ror:2","row_ror:1"): dpp("v_add_f32",a,a,a,ctl)
    def anyneg(rs,t):
        A(f"v_max3_u32 v{t}, v{rs[0]}, v{rs[1]}, v{rs[2]}")
        rs=rs[3:]
        while len(rs)>=2:
            A(f"v_max3_u32 v{t}, v{t}, v{rs[0]}, v{rs[1]}"); rs=rs[2:]
        if rs: A(f"v_max_u32 v{t}, v{t}, v{rs[0]}")
        A(f"v_cmp_eq_u32 vcc, -1, v{t}")
    A("s_cmp_lg_u32 s41, 2"); A("s_cbranch_scc1 L_nored1")
    A("s_lshr_b32 s43, s57, 3"); A("s_lshl_b32 s43, s43, 5"); A("s_and_b32 s52, s57, 7"); A("s_add_u32 s43, s43, s52"); A("s_lshl_b32 s43, s43, 1")
    A("v_lshlrev_b32 v9, 4, v7"); A("v_add_u32 v9, s43, v9")
    A(f"v_mov_b32 v{XC}, 0")
    A(f"buffer_load_short_d16_hi v{XC}, v9, s[28:31], 0 offen")
    for r in range(4): A(f"v_mov_b32 v{AB+r}, 0")
    A("s_mov_b32 s53, 0")
    A("L_fpoll:")
    A(f"buffer_load_dwordx4 v[{AA}:{AA+3}], v{vL16}, s[36:39], s55 offen sc1")
    A("s_mov_b32 exec_hi, 0x0000ffff")
    A(f"buffer_load_dwordx4 v[{AB}:{AB+3}], v{vL16}, s[36:39], s55 offen offset:1024 sc1")
    A("s_mov_b64 exec, -1")
    A("s_waitcnt vmcnt(0)")
    anyneg([AA,AA+1,AA+2,AA+3,AB,AB+1,AB+2,AB+3],T)
    A("s_cbranch_vccz L_fok")
    A("s_sleep 32")
    A("s_add_u32 s53, s53, 1"); A(f"s_cmp_ge_u32 s53, {SPIN}"); A("s_cbranch_scc1 L_end")
    A("s_branch L_fpoll")
    A("L_fok:")
    for r in range(4): A(f"v_add_f32 v{AA+r}, v{AA+r}, v{AB+r}")
    red64(AA)
    A(f"v_cvt_pk_bf16_f32 v{BF}, v{AA}, v{AA}"); A(f"v_and_b32 v{BF}, 0xffff0000, v{BF}")
    A("L_nored1:")
    srd(28,22,900)
    srd(32,12,4096*896)
    A("v_mul_u32_u24 v8, 7168, v7"); A("v_add_u32 v8, v8, v5")
    A("s_lshl_b32 s43, s60, 8"); A("s_bfe_u32 s52, s61, 0x10001"); A("s_lshl_b32 s52, s52, 7"); A("s_add_u32 s43, s43, s52")
    A("s_lshr_b32 s52, s61, 2"); A("s_lshl_b32 s52, s52, 5"); A("s_add_u32 s43, s43, s52")
    A("s_and_b32 s52, s61, 1"); A("s_lshl_b32 s52, s52, 2"); A("s_add_u32 s43, s43, s52"); A("s_mul_i32 s49, s43, 896")
    wol=lambda: rowloads(WO,8,"s[32:35]",[("s49",896*u) for u in range(4)],NT)
    if not latewo: wol()
    A("v_lshlrev_b32 v4, 12, v4")
    A("v_lshrrev_b32 v5, 2, v0"); A("v_and_b32 v6, 3, v0"); A("v_lshlrev_b32 v6, 4, v6"); A("v_lshl_add_u32 v6, v5, 11, v6")
    A("v_lshlrev_b32 v5, 3, v5")
    A("v_lshlrev_b32 v2, 11, v0")
    A("s_lshl_b32 s43, s60, 15"); A(f"s_add_u32 s43, s43, {INB1}"); A("s_lshl_b32 s52, s61, 6"); A("s_add_u32 s59, s43, s52")
    A("s_lshl_b32 s52, s61, 3"); A("s_add_u32 s63, s43, s52")
    A("s_lshl_b32 s43, s2, 4"); A(f"s_add_u32 s55, s43, {INB2}"); A(f"s_add_u32 s48, s55, {64*4096}")
    A("v_mov_b32 v1, 0")
    stamp(4)
    if DYN:
        TK=240
        A("s_mov_b64 exec, 1")
        A("s_waitcnt vmcnt(0)")
        A("s_barrier")
        def atomic(i):
            A(f"v_mov_b32 v{TK+i}, 1")
            A(f"buffer_atomic_add v{TK+i}, v1, s[36:39], s54 offen sc0")
        for i in range(LA): atomic(i)
        A("s_mov_b32 s53, 0"); A("s_mov_b32 s52, 0")
        A("L_tloop:")
        per=LA*2//math.gcd(LA,2)
        par0=(S-extras-RT)%2
        for q in range(per):
            i=q%LA
            A(f"s_waitcnt vmcnt({LA-1})")
            A(f"ds_write_b32 v1, v{TK+i} offset:{512+4*((q+par0)%2)}")
            A(f"v_readfirstlane_b32 s43, v{TK+i}")
            A("s_waitcnt lgkmcnt(0)")
            atomic(i)
            A("s_barrier")
            A("s_add_u32 s52, s52, 1"); A(f"s_cmp_ge_u32 s52, {1200-S+1}"); A(f"s_cselect_b32 s43, {POOL}, s43")
            A(f"s_cmp_ge_u32 s43, {POOL}"); A("s_addc_u32 s53, s53, 0")
            A(f"s_cmp_ge_u32 s53, {RT}"); A("s_cbranch_scc1 L_tdone")
        A("s_branch L_tloop")
        A("L_tdone:")
        A("s_mov_b64 exec, -1")
    A("s_barrier")
    stamp(5)
    O=AA; ML=T
    for w in range(4): A(f"ds_read_b128 v[{O+4*w}:{O+4*w+3}], v{vL16} offset:{1024+1024*w}")
    A(f"ds_read_b128 v[{ML}:{ML+3}], v1 offset:640"); A(f"ds_read_b128 v[{ML+4}:{ML+7}], v1 offset:656")
    if latewo: wol()
    A("s_waitcnt lgkmcnt(0)")
    A(f"v_max3_f32 v{P}, v{ML}, v{ML+2}, v{ML+4}"); A(f"v_max_f32 v{P}, v{P}, v{ML+6}")
    for w in range(4): A(f"v_sub_f32 v{ML+2*w}, v{ML+2*w}, v{P}")
    for w in range(4): A(f"v_mul_f32 v{ML+2*w}, s40, v{ML+2*w}")
    for w in range(4): A(f"v_exp_f32 v{ML+2*w}, v{ML+2*w}")
    A(f"v_mul_f32 v{P+1}, v{ML}, v{ML+1}")
    for r in range(4): A(f"v_mul_f32 v{O+r}, v{ML}, v{O+r}")
    for w in range(1,4):
        for r in range(4): A(f"v_fmac_f32 v{O+r}, v{ML+2*w}, v{O+4*w+r}")
        A(f"v_fmac_f32 v{P+1}, v{ML+2*w}, v{ML+2*w+1}")
    for r in range(4): A(f"v_min_u32 v{O+r}, -2, v{O+r}")
    A(f"buffer_store_dwordx4 v[{O}:{O+3}], v6, s[36:39], s59 offen sc1")
    A(f"v_min_u32 v{P}, -2, v{P}"); A(f"v_min_u32 v{P+1}, -2, v{P+1}")
    A("s_mov_b64 exec, 0xffff")
    A(f"buffer_store_dwordx2 v[{P}:{P+1}], v2, s[36:39], s63 offen offset:1024 sc1")
    A("s_mov_b64 exec, -1")
    A("s_mov_b32 s53, 0")
    O=AB
    A("L_poll1:")
    A(f"buffer_load_dwordx4 v[{O}:{O+3}], v{vL16}, s[36:39], s58 offen sc1")
    A(f"buffer_load_dwordx2 v[{O+4}:{O+5}], v5, s[36:39], s58 offen offset:1024 sc1")
    A("s_add_u32 s53, s53, 1"); A(f"s_cmp_ge_u32 s53, {SPIN}"); A("s_cbranch_scc1 L_end")
    A("s_waitcnt vmcnt(0)")
    anyneg([O,O+1,O+2,O+3,O+4,O+5],T)
    A("s_cbranch_vccnz L_poll1")
    stamp(6)
    dpp("v_max_f32",T,O+4,O+4,"row_ror:4"); dpp("v_max_f32",T,T,T,"row_ror:8"); xrow("v_max_f32",T,T+1)
    A(f"v_sub_f32 v{T}, v{O+4}, v{T}"); A(f"v_mul_f32 v{T}, s40, v{T}"); A(f"v_exp_f32 v{T}, v{T}")
    for r in range(4): A(f"v_mul_f32 v{O+r}, v{O+r}, v{T}")
    A(f"v_mul_f32 v{O+5}, v{O+5}, v{T}")
    merge4(O,O+1,O+2,O+3)
    xrow("v_add_f32",O+5,T+1)
    for ctl in ("row_ror:4","row_ror:8"):
        dpp("v_add_f32",O+5,O+5,O+5,ctl); dpp("v_add_f32",O,O,O,ctl)
    A(f"v_rcp_f32 v{O+5}, v{O+5}"); A(f"v_mul_f32 v{O}, v{O}, v{O+5}")
    A(f"v_cvt_pk_bf16_f32 v{O}, v{O}, v{O}")
    gemvB(WO,[(O,0),(O,1),(O,2),(O,3)]); scatter(4,"s55","s48")
    A("s_cmp_lg_u32 s41, 2"); A("s_cbranch_scc1 L_hend")
    A("s_mov_b32 s53, 0")
    O=AA
    A("L_poll2:")
    for k in range(4): A(f"buffer_load_dwordx4 v[{O+4*k}:{O+4*k+3}], v{vL16}, s[36:39], s56 offen offset:{1024*k} sc1")
    A("s_add_u32 s53, s53, 1"); A(f"s_cmp_ge_u32 s53, {SPIN}"); A("s_cbranch_scc1 L_end")
    A("s_waitcnt vmcnt(0)")
    anyneg([O+k for k in range(16)],T)
    A("s_cbranch_vccnz L_poll2")
    for r in range(4):
        A(f"v_add_f32 v{O+r}, v{O+r}, v{O+4+r}"); A(f"v_add_f32 v{O+8+r}, v{O+8+r}, v{O+12+r}")
    for r in range(4): A(f"v_add_f32 v{O+r}, v{O+r}, v{O+8+r}")
    red64(O)
    A(f"v_cvt_pk_bf16_f32 v{O}, v{O}, v{O}"); A(f"v_and_b32 v{O}, 0xffff0000, v{O}")
    A(f"v_add_f32 v{O}, v{XC}, v{O}")
    A(f"v_cvt_pk_bf16_f32 v{O}, v{O}, v{O}"); A(f"v_and_b32 v{O}, 0xffff0000, v{O}")
    A(f"v_add_f32 v{O}, v{O}, v{BF}")
    A(f"v_cvt_pk_bf16_f32 v{O}, v{O}, v{O}")
    A("s_mov_b32 exec_lo, 0x00010001"); A("s_mov_b32 exec_hi, 0x00010001")
    A(f"buffer_store_short v{O}, v9, s[28:31], 0 offen")
    A("L_hend:")
    stamp(7)
    write_stamps()
    A("L_end:")
    A("s_endpgm")
    A(f""".section .rodata,"a"
.p2align 6
.amdhsa_kernel {NAME}_kernel
  .amdhsa_next_free_vgpr 256
  .amdhsa_next_free_sgpr 96
  .amdhsa_accum_offset 256
  .amdhsa_group_segment_fixed_size 0
  .amdhsa_kernarg_size 96
  .amdhsa_user_sgpr_count 2
  .amdhsa_user_sgpr_kernarg_segment_ptr 1
  .amdhsa_system_sgpr_workgroup_id_x 1
.end_amdhsa_kernel""")
    body=pad(L)
    return "\n".join(body)+"\n"

if __name__=='__main__':
    kw={}
    out=sys.argv[1]
    for t in sys.argv[2:]:
        k,v=t.split('=')
        if k in('S','LA','extras'): v=int(v)
        elif k in('stamps','latewo'): v=bool(int(v))
        else: v=v.replace('_',' ')
        kw[k]=v
    open(out,'w').write(gen(**kw))
```

```python
import struct, sys, math
from asmlib import pad
NAME='parallel_sum__mha_block_cached__geglu_ffn__decode'
def f2h(x): return '0x%08x'%struct.unpack('<I',struct.pack('<f',x))[0]
C_SC=f2h(math.log2(math.e)/16)
QBUF=0x0; INB1=0x10000; INB2=0x100000; INB2F=0x180000; TICK=0x1C0000; WSN=0x200000
RB=16384
SPIN=1<<17

def gen(S=64, NT='nt', WNT='nt', stamps=False, LA=1, latewo=False, extras=None, header=True, RT=1, thr=None, pthr=None, b0=1, dbg='', MID=28, KNT=None, VNT=None, scr=0):
    L=[]; A=L.append
    DYN = S<64
    POOL=(64-S)*16
    KNT = NT if KNT is None else KNT.replace('none','')
    VNT = NT if VNT is None else VNT.replace('none','')
    WNT = WNT.replace('none','')
    if extras is None: extras=6-RT
    if thr is None: thr=4+(RT-1)*8
    if pthr is None: pthr=thr
    st=[0]
    def stamp(k):
        if stamps: A(f"s_memrealtime s[{64+2*k}:{65+2*k}]")
    def srd(b,p,n):
        A(f"s_mov_b32 s{b}, s{p}"); A(f"s_mov_b32 s{b+1}, s{p+1}"); A(f"s_mov_b32 s{b+2}, {n}"); A(f"s_mov_b32 s{b+3}, 0x00020000")
    def write_stamps():
        if not stamps: return
        A("s_waitcnt lgkmcnt(0)")
        A("s_mov_b32 s80, s26"); A("s_mov_b32 s81, s27"); A("s_mov_b32 s82, 0x40000000"); A("s_mov_b32 s83, 0x00020000")
        A("s_mul_i32 s84, s2, 5"); A("s_add_u32 s84, s84, s3"); A("s_lshl_b32 s84, s84, 6"); A("s_add_u32 s84, s84, 0x20000000")
        A("s_mov_b64 exec, 1"); A("v_mov_b32 v1, 0")
        for k in range(4):
            for i in range(4): A(f"v_mov_b32 v{4+i}, s{64+4*k+i}")
            A(f"buffer_store_dwordx4 v[4:7], v1, s[80:83], s84 offen offset:{16*k}")
            A("s_nop 1")
        A("s_waitcnt vmcnt(0)")
    def masks(b, tmp):
        A(f"v_and_b32 v{tmp}, 1, v0"); A(f"v_cmp_eq_u32 vcc, 1, v{tmp}")
        A(f"v_mov_b32 v{tmp}, 0xffff"); A(f"v_mov_b32 v{tmp+1}, 0xffff0000")
        A(f"v_cndmask_b32 v{tmp}, v{tmp}, v{tmp+1}, vcc")
        A(f"v_bfe_u32 v{tmp+1}, v0, 1, 2")
        for t in range(4):
            A(f"v_cmp_eq_u32 vcc, {t}, v{tmp+1}")
            A(f"v_cndmask_b32 v{b+t}, 0, v{tmp}, vcc")
    def dpp(op,d,a,b,ctl): A(f"{op}_dpp v{d}, v{a}, v{b} {ctl} row_mask:0xf bank_mask:0xf")
    def xrow(op,r,t):
        A(f"v_mov_b32 v{t}, v{r}"); A(f"v_permlane16_swap_b32 v{r}, v{t}"); A(f"{op} v{r}, v{r}, v{t}")
        A(f"v_mov_b32 v{t}, v{r}"); A(f"v_permlane32_swap_b32 v{r}, v{t}"); A(f"{op} v{r}, v{r}, v{t}")
    def merge4(a,b,c,d):
        A(f"v_permlane32_swap_b32 v{a}, v{c}"); A(f"v_permlane32_swap_b32 v{b}, v{d}")
        A(f"v_add_f32 v{a}, v{a}, v{c}"); A(f"v_add_f32 v{b}, v{b}, v{d}")
        A(f"v_permlane16_swap_b32 v{a}, v{b}"); A(f"v_add_f32 v{a}, v{a}, v{b}")

    if header:
        A("; decode block: x + attention(LN(x)) @ wo + GEGLU-FFN(LN(x)); one workgroup per CU, 4 streaming waves + 1 helper wave")
        A("; @launch grid=(256,1,1) block=(320,1,1) lds=8192")
    A('.amdgcn_target "amdgcn-amd-amdhsa--gfx950"')
    A(".text"); A(f".globl {NAME}_kernel"); A(".p2align 8"); A(f".type {NAME}_kernel,@function"); A(f"{NAME}_kernel:")
    if stamps:
        for k in range(1,8): A(f"s_mov_b64 s[{64+2*k}:{65+2*k}], 0")
    stamp(0)
    A("s_cmp_ge_u32 s2, 256"); A("s_cbranch_scc1 L_end")
    if scr:
        for bit,mask in ((0,12),(1,32),(2,24),(3,35),(4,33),(5,4),(0,48),(1,20),(3,6),(6,3),(7,5)):
            A(f"s_bitcmp1_b32 s2, {bit}"); A(f"s_cselect_b32 s3, {mask}, 0"); A("s_xor_b32 s2, s2, s3")
    A("s_load_dwordx16 s[4:19], s[0:1], 0")
    A("s_load_dwordx8 s[20:27], s[0:1], 64")
    A("v_lshrrev_b32 v1, 6, v0"); A("v_and_b32 v0, 63, v0"); A("v_readfirstlane_b32 s3, v1")
    A("s_lshr_b32 s60, s2, 4"); A("s_and_b32 s61, s2, 15")
    A(f"s_mov_b32 s40, {C_SC}")
    A("s_cmp_eq_u32 s3, 4"); A("s_cbranch_scc1 L_helper")

    vK,vV,vT=1,2,3; M=4; SEL=8; vm=9; vl=10; D=12; AC0=16; AC1=20; B0=24; B1=28; Q=32
    s0,s1,t0,t1,t2=48,49,50,51,52
    RING=[56+32*i for i in range(RT)]; EXT=[56+32*(RT+i) for i in range(extras)]
    A("v_and_b32 v1, 7, v0"); A("v_lshlrev_b32 v1, 9, v1")
    A("v_bfe_u32 v2, v0, 3, 1"); A("v_lshl_add_u32 v1, v2, 6, v1")
    A("v_lshrrev_b32 v3, 4, v0"); A("v_lshl_add_u32 v1, v3, 4, v1")
    A("v_bfe_u32 v2, v0, 4, 1"); A("v_lshlrev_b32 v2, 11, v2")
    A("v_lshrrev_b32 v3, 5, v0"); A("v_lshl_add_u32 v2, v3, 9, v2")
    A("v_and_b32 v3, 15, v0"); A("v_lshl_add_u32 v2, v3, 4, v2")
    A("s_lshl_b32 s41, s60, 24"); A("s_lshl_b32 s43, s3, 12"); A("s_add_u32 s41, s41, s43")
    A(f"s_mul_i32 s36, s61, {S*RB}"); A("s_add_u32 s36, s36, s41")
    A(f"s_add_u32 s41, s41, {16*S*RB}")
    A("s_waitcnt lgkmcnt(0)")
    srd(28,6,'0x10000000'); srd(32,8,'0x10000000')
    def kloads(b):
        for t in range(4): A(f"buffer_load_dwordx4 v[{b+4*t}:{b+4*t+3}], v{vK}, s[28:31], s36 offen offset:{128*t} {KNT}")
    def vloads(b):
        for u in range(4): A(f"buffer_load_dwordx4 v[{b+16+4*u}:{b+16+4*u+3}], v{vV}, s[32:35], s36 offen offset:{(u>>1)*1024+(u&1)*256} {VNT}")
    if b0==2: A("s_barrier")
    for n,b in enumerate(RING+EXT):
        if 8*n>pthr: A(f"s_waitcnt vmcnt({pthr})")
        kloads(b)
        if n==0:
            masks(M,t0)
            A(f"v_and_b32 v{t0}, 8, v0"); A(f"v_cmp_eq_u32 vcc, 8, v{t0}"); A(f"v_cndmask_b32 v{SEL}, 0, 1.0, vcc")
            A(f"v_mov_b32 v{vm}, 0xff7fffff"); A(f"v_mov_b32 v{vl}, 0")
            for r in range(8): A(f"v_mov_b32 v{AC0+r}, 0")
            A(f"v_and_b32 v{vT}, 1, v0"); A(f"v_lshlrev_b32 v{vT}, 6, v{vT}")
            A(f"v_lshrrev_b32 v{t0}, 4, v0"); A(f"v_lshl_add_u32 v{vT}, v{t0}, 4, v{vT}")
            if b0==1: A("s_barrier")
        if 8*n+4>pthr: A(f"s_waitcnt vmcnt({pthr})")
        vloads(b)
        A(f"s_add_u32 s36, s36, {RB}")
    A(f"s_mov_b32 s37, {RT+extras}"); A("s_mov_b32 s38, 1"); A("s_mov_b32 s39, 1"); A("s_mov_b32 s42, 1")
    stamp(1)
    A("s_barrier")
    for t in range(4): A(f"ds_read_b128 v[{Q+4*t}:{Q+4*t+3}], v{vT} offset:{128*t}")
    A(f"v_mov_b32 v{vT}, 0")
    A("s_waitcnt lgkmcnt(0)")
    stamp(2)
    uid=[0]
    def qk(b):
        for t in range(4):
            A(f"v_mfma_f32_16x16x32_bf16 v[{D}:{D+3}], v[{b+4*t}:{b+4*t+3}], v[{Q+4*t}:{Q+4*t+3}], "+("0" if t==0 else f"v[{D}:{D+3}]"))
    def softmax():
        uid[0]+=1; u=uid[0]
        A(f"v_permlane32_swap_b32 v{D}, v{D+1}"); A(f"v_permlane32_swap_b32 v{D+2}, v{D+3}")
        A(f"v_mov_b32_dpp v{t0}, v{D+1} quad_perm:[1,1,3,3] row_mask:0xf bank_mask:0xf")
        A(f"v_mov_b32_dpp v{t1}, v{D+3} quad_perm:[1,1,3,3] row_mask:0xf bank_mask:0xf")
        dpp("v_add_f32",s0,D,t0,"quad_perm:[0,0,2,2]"); dpp("v_add_f32",s1,D+2,t1,"quad_perm:[0,0,2,2]")
        A(f"v_cvt_pk_bf16_f32 v{t0}, v{s0}, v{s1}")
        A(f"v_lshlrev_b32 v{s0}, 16, v{t0}"); A(f"v_and_b32 v{s1}, 0xffff0000, v{t0}")
        A(f"v_max_f32 v{t1}, v{s0}, v{s1}")
        A(f"v_cmp_gt_f32 vcc, v{t1}, v{vm}")
        A(f"s_cbranch_vccz L_nomax{u}")
        xrow("v_max_f32",t1,t2)
        A(f"v_max_f32 v{t1}, v{t1}, v{vm}")
        A(f"v_sub_f32 v{t2}, v{vm}, v{t1}"); A(f"v_mul_f32 v{t2}, s40, v{t2}"); A(f"v_exp_f32 v{t2}, v{t2}")
        A(f"v_mov_b32 v{vm}, v{t1}")
        A(f"v_mul_f32 v{vl}, v{vl}, v{t2}")
        for r in range(8): A(f"v_mul_f32 v{AC0+r}, v{AC0+r}, v{t2}")
        A(f"L_nomax{u}:")
        A(f"v_sub_f32 v{s0}, v{s0}, v{vm}"); A(f"v_sub_f32 v{s1}, v{s1}, v{vm}")
        A(f"v_mul_f32 v{s0}, s40, v{s0}"); A(f"v_mul_f32 v{s1}, s40, v{s1}")
        A(f"v_exp_f32 v{s0}, v{s0}"); A(f"v_exp_f32 v{s1}, v{s1}")
        A(f"v_add_f32 v{vl}, v{vl}, v{s0}")
        A(f"v_cvt_pk_bf16_f32 v{t0}, v{s0}, v{s1}")
        A(f"v_add_f32 v{vl}, v{vl}, v{s1}")
        A(f"v_lshlrev_b32 v{t1}, 16, v{t0}"); A(f"v_and_b32 v{t2}, 0xffff0000, v{t0}")
        A(f"v_fma_f32 v{s0}, -v{t1}, v{SEL}, v{s0}"); A(f"v_fma_f32 v{s1}, -v{t2}, v{SEL}, v{s1}")
        A(f"v_cvt_pk_bf16_f32 v{t0}, v{s0}, v{s0}"); A(f"v_cvt_pk_bf16_f32 v{t1}, v{s1}, v{s1}")
        for t in range(4): A(f"v_and_b32 v{B0+t}, v{t0}, v{M+t}")
        for t in range(4): A(f"v_and_b32 v{B1+t}, v{t1}, v{M+t}")
    def pv(b):
        for u in range(4):
            ac=AC1 if (u&1) else AC0; bb=B1 if (u>>1) else B0
            A(f"v_mfma_f32_16x16x32_bf16 v[{ac}:{ac+3}], v[{b+16+4*u}:{b+16+4*u+3}], v[{bb}:{bb+3}], v[{ac}:{ac+3}]")
    A("L_loop:")
    for sl in range(2):
        b=RING[sl%RT]; fl=38+sl%RT
        A(f"s_cmp_eq_u32 s{fl}, 0"); A("s_cbranch_scc1 L_sdone")
        A(f"s_waitcnt vmcnt({thr})")
        qk(b)
        A(f"s_cmp_lt_u32 s37, {S}"); A(f"s_cbranch_scc1 L_st{sl}")
        if DYN:
            A("s_barrier")
            A(f"ds_read_b32 v{t0}, v{vT} offset:{512+4*sl}"); A("s_waitcnt lgkmcnt(0)")
            A(f"v_readfirstlane_b32 s43, v{t0}")
            A("s_cmp_ge_u32 s37, 1200"); A(f"s_cselect_b32 s43, {POOL}, s43")
            A(f"s_cmp_lt_u32 s43, {POOL}")
            A("s_cselect_b32 s30, 0x10000000, 0"); A("s_cselect_b32 s34, 0x10000000, 0"); A(f"s_cselect_b32 s{fl}, 1, 0")
            A(f"s_min_u32 s43, s43, {POOL-1}"); A("s_lshl_b32 s43, s43, 14"); A("s_add_u32 s36, s41, s43")
        else:
            A("s_mov_b32 s30, 0"); A("s_mov_b32 s34, 0"); A(f"s_mov_b32 s{fl}, 0"); A("s_mov_b32 s36, 0")
        A(f"L_st{sl}:")
        kloads(b)
        softmax()
        A(f"s_waitcnt vmcnt({thr})")
        pv(b)
        vloads(b)
        A(f"s_add_u32 s36, s36, {RB}"); A("s_add_u32 s37, s37, 1")
        if sl==(MID-1-extras-RT)%2:
            A(f"s_cmp_lg_u32 s37, {MID}"); A("s_cbranch_scc1 L_nomid"); A("s_barrier"); A("L_nomid:")
        if DYN and sl==(S-1-LA-extras-RT)%2:
            A(f"s_cmp_lg_u32 s37, {S-LA}"); A("s_cbranch_scc1 L_nokick"); A("s_barrier"); A("L_nokick:")
    A("s_cmp_eq_u32 s42, 0"); A("s_cbranch_scc1 L_loop")
    A("s_mov_b32 s42, 0")
    A("s_waitcnt vmcnt(16)")
    for b in EXT:
        qk(b); softmax(); pv(b)
    stamp(3)
    A("s_branch L_loop")
    A("L_sdone:")
    stamp(4)
    for r in range(8): dpp("v_add_f32",AC0+r,AC0+r,AC0+r,"row_ror:8")
    A("s_mov_b32 s46, 0xff00ff00"); A("s_mov_b32 s47, 0xff00ff00")
    for r in range(4): A(f"v_cndmask_b32 v{AC0+r}, v{AC0+r}, v{AC1+r}, s[46:47]")
    A("s_lshl_b32 s43, s3, 10"); A(f"v_lshl_add_u32 v{t0}, v0, 4, s43")
    A(f"ds_write_b128 v{t0}, v[{AC0}:{AC0+3}] offset:1024")
    xrow("v_add_f32",vl,t2)
    A("s_lshl_b32 s43, s3, 3"); A(f"v_mov_b32 v{t0}, s43")
    A(f"v_mov_b32 v{s0}, v{vm}"); A(f"v_mov_b32 v{s1}, v{vl}")
    A("s_mov_b64 exec, 1")
    A(f"ds_write_b64 v{t0}, v[{s0}:{s1}] offset:640")
    A("s_waitcnt lgkmcnt(0)")
    A("s_barrier")
    write_stamps()
    A("s_endpgm")

    X=10; XL=24; M=38; AA=42; AB=50; T=58; NEG=70; P=74; BB=78; DD=94; XC=110; BF=111; W1=112; W2=168; WD=112; WO=176
    vL16=3
    A("L_helper:")
    A("s_setprio 3")
    A("s_lshr_b32 s62, s2, 5"); A("s_lshl_b32 s62, s62, 3"); A("s_and_b32 s43, s2, 7"); A("s_add_u32 s62, s62, s43"); A("s_lshl_b32 s62, s62, 2")
    A("s_bfe_u32 s43, s2, 0x20003"); A("s_add_u32 s62, s62, s43")
    A("v_lshrrev_b32 v4, 1, v0"); A("v_lshlrev_b32 v1, 1, v4")
    A("v_and_b32 v5, 1, v0"); A("v_lshlrev_b32 v2, 13, v4"); A("v_lshl_add_u32 v2, v5, 4, v2")
    A("v_mul_u32_u24 v6, 3584, v4"); A("v_lshl_add_u32 v6, v5, 4, v6")
    A(f"v_lshlrev_b32 v{vL16}, 4, v0")
    A("v_lshrrev_b32 v7, 4, v0"); A("v_lshl_add_u32 v4, v5, 2, v7"); A("v_lshlrev_b32 v4, 3, v4")
    for u in range(14): A(f"v_mov_b32 v{X+u}, 0")
    for r in range(4): A(f"v_mov_b32 v{NEG+r}, -1")
    A("s_waitcnt lgkmcnt(0)")
    srd(28,4,900); srd(32,10,448*8192); srd(36,26,hex(WSN))
    A("s_lshl_b32 s63, s62, 6")
    A(f"buffer_load_dword v5, v4, s[36:39], s63 offen offset:{QBUF+4} sc1")
    A("s_lshl_b32 s59, s60, 10")
    A(f"buffer_load_dwordx4 v[{P}:{P+3}], v{vL16}, s[36:39], s59 offen offset:{QBUF} sc1")
    for u in range(14): A(f"buffer_load_short_d16_hi v{X+u}, v1, s[28:31], 0 offen offset:{64*u}")
    A("s_lshl_b32 s43, s62, 5")
    for u in range(14):
        A(f"buffer_load_dwordx4 v[{W1+4*u}:{W1+4*u+3}], v2, s[32:35], s43 offen {WNT}")
        if u<13: A("s_add_u32 s43, s43, 0x40000")
    if b0: A("s_barrier")
    A("s_lshl_b32 s43, s2, 11"); A(f"s_add_u32 s58, s43, {INB1}")
    A("s_and_b32 s42, s2, 7"); A("s_mul_i32 s57, s42, 14"); A("s_add_u32 s57, s57, s60")
    A("s_cmp_gt_u32 s60, s42"); A("s_subb_u32 s57, s57, 0")
    A("s_add_u32 s43, s42, 8"); A("s_cmp_gt_u32 s60, s43"); A("s_subb_u32 s57, s57, 0")
    A("s_bfe_u32 s41, s2, 0x10003"); A("s_add_u32 s41, s41, 1")
    A("s_and_b32 s43, s60, 7"); A("s_cmp_eq_u32 s43, s42"); A("s_cselect_b32 s41, 0, s41"); A("s_cselect_b32 s57, 0, s57")
    A("s_lshl_b32 s56, s57, 12"); A(f"s_add_u32 s56, s56, {INB2}")
    A("s_lshl_b32 s55, s57, 11"); A(f"s_add_u32 s55, s55, {INB2F}")
    A("s_lshl_b32 s54, s60, 8"); A(f"s_add_u32 s54, s54, {TICK}")
    def clears(lbl):
        if 'C' in dbg: return
        A(f"buffer_store_dwordx4 v[{NEG}:{NEG+3}], v{vL16}, s[36:39], s58 offen sc1")
        A("s_mov_b64 exec, 0xff")
        A(f"buffer_store_dwordx4 v[{NEG}:{NEG+3}], v{vL16}, s[36:39], s58 offen offset:1024 sc1")
        A("s_mov_b64 exec, -1")
        A("s_cmp_lg_u32 s41, 2"); A(f"s_cbranch_scc1 {lbl}a")
        for k in range(4): A(f"buffer_store_dwordx4 v[{NEG}:{NEG+3}], v{vL16}, s[36:39], s56 offen offset:{1024*k} sc1")
        for k in range(2): A(f"buffer_store_dwordx4 v[{NEG}:{NEG+3}], v{vL16}, s[36:39], s55 offen offset:{1024*k} sc1")
        A(f"{lbl}a:")
        if DYN:
            A("s_cmp_lg_u32 s61, 0"); A(f"s_cbranch_scc1 {lbl}b")
            A(f"v_mov_b32 v{T+6}, 0")
            A("s_mov_b64 exec, 1")
            A(f"buffer_store_dword v{T+6}, v{T+6}, s[36:39], s54 offen sc1")
            A("s_mov_b64 exec, -1")
            A(f"{lbl}b:")
        A("s_waitcnt vmcnt(0)")
    masks(M,T)
    def allred(r,t):
        dpp("v_add_f32",r,r,r,"quad_perm:[2,3,0,1]"); dpp("v_add_f32",r,r,r,"row_ror:4"); dpp("v_add_f32",r,r,r,"row_ror:8")
        xrow("v_add_f32",r,t)
    A("s_waitcnt vmcnt(14)")
    A(f"v_add_f32 v{T}, v{X}, v{X+1}"); A(f"v_add_f32 v{T+1}, v{X+2}, v{X+3}")
    for u in range(4,14,2):
        A(f"v_add_f32 v{T}, v{T}, v{X+u}"); A(f"v_add_f32 v{T+1}, v{T+1}, v{X+u+1}")
    A(f"v_add_f32 v{T}, v{T}, v{T+1}")
    allred(T,T+1)
    A(f"v_mul_f32 v{T}, {f2h(1/448)}, v{T}")
    for u in range(14): A(f"v_sub_f32 v{XL+u}, v{X+u}, v{T}")
    A(f"v_mul_f32 v{T+1}, v{XL}, v{XL}"); A(f"v_mul_f32 v{T+2}, v{XL+1}, v{XL+1}")
    for u in range(2,14,2):
        A(f"v_fmac_f32 v{T+1}, v{XL+u}, v{XL+u}"); A(f"v_fmac_f32 v{T+2}, v{XL+u+1}, v{XL+u+1}")
    A(f"v_add_f32 v{T+1}, v{T+1}, v{T+2}")
    allred(T+1,T+2)
    A(f"v_mul_f32 v{T+1}, {f2h(1/448)}, v{T+1}")
    A(f"v_cvt_pk_bf16_f32 v{T+2}, v{T}, v{T+1}")
    A(f"v_lshlrev_b32 v{T}, 16, v{T+2}"); A(f"v_and_b32 v{T+1}, 0xffff0000, v{T+2}")
    A(f"v_add_f32 v{T+1}, {f2h(1e-5)}, v{T+1}")
    A(f"v_cvt_pk_bf16_f32 v{T+1}, v{T+1}, v{T+1}"); A(f"v_and_b32 v{T+1}, 0xffff0000, v{T+1}")
    A(f"v_sqrt_f32 v{T+1}, v{T+1}")
    A(f"v_cvt_pk_bf16_f32 v{T+1}, v{T+1}, v{T+1}"); A(f"v_and_b32 v{T+1}, 0xffff0000, v{T+1}")
    A(f"v_rcp_f32 v{T+1}, v{T+1}")
    for u in range(0,14,2):
        a,b=X+u,X+u+1
        A(f"v_sub_f32 v{a}, v{a}, v{T}"); A(f"v_sub_f32 v{b}, v{b}, v{T}")
        A(f"v_cvt_pk_bf16_f32 v{T+2}, v{a}, v{b}")
        A(f"v_lshlrev_b32 v{a}, 16, v{T+2}"); A(f"v_and_b32 v{b}, 0xffff0000, v{T+2}")
        A(f"v_mul_f32 v{a}, v{a}, v{T+1}"); A(f"v_mul_f32 v{b}, v{b}, v{T+1}")
        A(f"v_cvt_pk_bf16_f32 v{T+2}, v{a}, v{b}")
        A(f"v_lshlrev_b32 v{a}, 16, v{T+2}"); A(f"v_and_b32 v{b}, 0xffff0000, v{T+2}")
        A(f"v_and_b32 v{XL+u}, 0xffff, v{T+2}"); A(f"v_lshrrev_b32 v{XL+u+1}, 16, v{T+2}")
    def gemvA(W,a,younger=None):
        for u in range(14):
            if younger is not None: A(f"s_waitcnt vmcnt({younger+13-u})")
            for t in range(4):
                A(f"v_dot2_f32_bf16 v{a+2*t}, v{W+4*u+t}, v{XL+u}, "+("0" if u==0 else f"v{a+2*t}"))
                A(f"v_dot2_f32_bf16 v{a+2*t+1}, v{W+4*u+t}, v{X+u}, "+("0" if u==0 else f"v{a+2*t+1}"))
        merge4(a,a+2,a+4,a+6); merge4(a+1,a+3,a+5,a+7)
        for ctl in ("quad_perm:[2,3,0,1]","row_ror:4","row_ror:8"):
            dpp("v_add_f32",a,a,a,ctl); dpp("v_add_f32",a+1,a+1,a+1,ctl)
    gemvA(W1,AA,0)
    A(f"v_cvt_pk_bf16_f32 v{T}, v{AA}, v{AA+1}"); A(f"v_add_u32 v{T+1}, 1, v5")
    A(f"v_add_u32 v8, 1, v{P+1}"); A(f"v_add_u32 v9, 1, v{P+3}")
    A("s_mov_b32 exec_lo, 0x00030003"); A("s_mov_b32 exec_hi, 0x00030003")
    A(f"buffer_store_dwordx2 v[{T}:{T+1}], v4, s[36:39], s63 offen offset:{QBUF} sc1")
    A("s_mov_b64 exec, -1")
    stamp(1)
    srd(40+4,24,256)
    A("s_lshr_b32 s43, s62, 4"); A("s_lshl_b32 s43, s43, 4"); A(f"v_mov_b32 v{T+2}, s43"); A(f"v_mov_b32 v{T+3}, 1")
    A("s_lshl_b32 s43, s60, 4"); A(f"v_mov_b32 v{T+4}, s43")
    A(f"buffer_load_dwordx4 v[{P}:{P+3}], v{vL16}, s[36:39], s59 offen offset:{QBUF} sc1")
    A("s_waitcnt vmcnt(0)")
    def arrive(lbl):
        A("s_cmp_lg_u32 s52, 0"); A(f"s_cbranch_scc1 {lbl}")
        A("s_mov_b32 s52, 1")
        clears(lbl)
        A("s_mov_b64 exec, 1")
        if 'A' not in dbg: A(f"buffer_atomic_add v{T+3}, v{T+2}, s[44:47], 0 offen")
        A("s_mov_b64 exec, -1")
        A(f"{lbl}:")
    A("s_mov_b32 s53, 0"); A("s_mov_b32 s52, 0")
    A("L_qpoll:")
    A(f"v_cmp_ne_u32 vcc, v8, v{P+1}"); A(f"v_cmp_ne_u32 s[48:49], v9, v{P+3}")
    A("s_or_b64 vcc, vcc, s[48:49]")
    A("s_cbranch_vccz L_qok")
    A("s_add_u32 s53, s53, 1")
    A("s_and_b32 s43, s53, 7"); A("s_cbranch_scc1 L_qld")
    A(f"s_cmp_ge_u32 s53, {SPIN}"); A("s_cbranch_scc1 L_end")
    arrive("L_arr1")
    A(f"buffer_load_dword v{T+5}, v{T+4}, s[44:47], 0 offen sc1"); A("s_waitcnt vmcnt(0)")
    A(f"v_cmp_gt_u32 vcc, 16, v{T+5}")
    A("s_cbranch_vccnz L_qld")
    A(f"buffer_load_dwordx4 v[{P}:{P+3}], v{vL16}, s[36:39], s59 offen offset:{QBUF} sc1"); A("s_waitcnt vmcnt(0)")
    A("s_branch L_qok")
    A("L_qld:")
    A(f"buffer_load_dwordx4 v[{P}:{P+3}], v{vL16}, s[36:39], s59 offen offset:{QBUF} sc1"); A("s_waitcnt vmcnt(0)")
    A("s_branch L_qpoll")
    A("L_qok:")
    A(f"v_mov_b32 v{P+1}, v{P+2}"); A(f"v_lshlrev_b32 v{T}, 3, v0")
    A(f"ds_write_b64 v{T}, v[{P}:{P+1}]")
    A("s_waitcnt lgkmcnt(0)")
    stamp(2)
    A("s_barrier")
    arrive("L_arr2")
    A("v_bfe_u32 v4, v0, 3, 1"); A("v_lshlrev_b32 v4, 5, v4"); A("v_lshrrev_b32 v7, 4, v0"); A("v_lshl_add_u32 v4, v7, 3, v4")
    A("v_and_b32 v5, 7, v0"); A("v_add_u32 v4, v4, v5")
    A("v_and_b32 v5, 15, v0"); A("v_lshlrev_b32 v5, 4, v5")
    A("s_mov_b32 s50, 0xff00ff00"); A("s_mov_b32 s51, 0xff00ff00")
    def rowloads(W,voff,srdr,soffs,flags):
        for cb in range(4):
            if cb==3: A("s_mov_b32 exec_lo, 0x00ff00ff"); A("s_mov_b32 exec_hi, 0x00ff00ff")
            for u in range(4):
                sg,im=soffs[u]
                A(f"buffer_load_dwordx4 v[{W+16*u+4*cb}:{W+16*u+4*cb+3}], v{voff}, {srdr}, {sg} offen offset:{im+256*cb} {flags}")
        A("s_mov_b64 exec, -1")
    def gemvB(W,srcs):
        for u,(r,k) in enumerate(srcs):
            for t in range(4): dpp("v_and_b32",BB+4*u+t,r,M+t,f"quad_perm:[{k},{k},{k},{k}]")
        for u in range(4):
            for cb in range(4):
                A(f"v_mfma_f32_16x16x32_bf16 v[{DD+4*cb}:{DD+4*cb+3}], v[{W+16*u+4*cb}:{W+16*u+4*cb+3}], v[{BB+4*u}:{BB+4*u+3}], "+("0" if u==0 else f"v[{DD+4*cb}:{DD+4*cb+3}]"))
    def scatter(voff,sbase,sbase2):
        for half in range(2):
            d=DD+8*half
            for r in range(4): A(f"v_cndmask_b32 v{d+r}, v{d+r}, v{d+4+r}, s[50:51]")
            for r in range(4): A(f"v_min_u32 v{d+r}, -2, v{d+r}")
            if half: A("s_mov_b32 exec_hi, 0x00ff00ff")
            A(f"buffer_store_dwordx4 v[{d}:{d+3}], v{voff}, s[36:39], {sbase2 if half else sbase} offen sc1")
        A("s_mov_b64 exec, -1")
    if 'F' in dbg: A("s_branch L_noffn")
    A("s_cmp_lg_u32 s41, 1"); A("s_cbranch_scc1 L_noffn")
    srd(32,16,448*3584)
    A("s_lshl_b32 s43, s57, 5")
    for u in range(14):
        A(f"buffer_load_dwordx4 v[{W1+4*u}:{W1+4*u+3}], v6, s[32:35], s43 offen {WNT}")
        if u<13: A(f"s_add_u32 s43, s43, {32*3584}")
    srd(32,18,448*3584)
    A("s_lshl_b32 s43, s57, 5")
    for u in range(14):
        A(f"buffer_load_dwordx4 v[{W2+4*u}:{W2+4*u+3}], v6, s[32:35], s43 offen {WNT}")
        if u<13: A(f"s_add_u32 s43, s43, {32*3584}")
    A("s_waitcnt vmcnt(14)")
    gemvA(W1,AA)
    A("s_waitcnt vmcnt(0)")
    gemvA(W2,AB)
    srd(32,20,1792*896)
    A("v_mul_u32_u24 v8, 1792, v7"); A("v_add_u32 v8, v8, v5")
    A(f"s_mul_i32 s43, s57, {16*896}"); A(f"s_add_u32 s52, s43, {8*896}")
    rowloads(WD,8,"s[32:35]",[("s43",0),("s43",896),("s52",0),("s52",896)],NT)
    A(f"v_cvt_pk_bf16_f32 v{T}, v{AA}, v{AA+1}"); A(f"v_cvt_pk_bf16_f32 v{T+1}, v{AB}, v{AB+1}")
    A(f"v_lshlrev_b32 v{AA}, 16, v{T}"); A(f"v_and_b32 v{AA+1}, 0xffff0000, v{T}")
    A(f"v_lshlrev_b32 v{AB}, 16, v{T+1}"); A(f"v_and_b32 v{AB+1}, 0xffff0000, v{T+1}")
    k0=math.sqrt(2/math.pi); k1=0.044715
    A(f"s_mov_b32 s48, {f2h(k1)}")
    for e in range(2):
        g=AA+e; t=T+2+e
        A(f"v_mul_f32 v{t}, v{g}, v{g}"); A(f"v_mul_f32 v{t}, v{t}, v{g}")
        A(f"v_fma_f32 v{t}, s48, v{t}, v{g}")
        A(f"v_mul_f32 v{t}, {f2h(-2*k0*math.log2(math.e))}, v{t}")
        A(f"v_exp_f32 v{t}, v{t}"); A(f"v_add_f32 v{t}, 1.0, v{t}"); A(f"v_rcp_f32 v{t}, v{t}")
        A(f"v_mul_f32 v{g}, v{g}, v{t}")
    A(f"v_cvt_pk_bf16_f32 v{T}, v{AA}, v{AA+1}")
    A(f"v_lshlrev_b32 v{AA}, 16, v{T}"); A(f"v_and_b32 v{AA+1}, 0xffff0000, v{T}")
    A(f"v_mul_f32 v{AA}, v{AA}, v{AB}"); A(f"v_mul_f32 v{AA+1}, v{AA+1}, v{AB+1}")
    A(f"v_cvt_pk_bf16_f32 v{AA}, v{AA}, v{AA}"); A(f"v_cvt_pk_bf16_f32 v{AA+1}, v{AA+1}, v{AA+1}")
    A("s_waitcnt vmcnt(0)")
    gemvB(WD,[(AA,0),(AA+1,0),(AA,1),(AA+1,1)])
    A("L_noffn:")
    stamp(3)
    A("s_barrier")
    if 'A' in dbg: A("s_branch L_aok")
    A("s_mov_b32 s53, 0")
    A("L_apoll:")
    A(f"buffer_load_dword v{T}, v{vL16}, s[44:47], 0 offen sc1"); A("s_waitcnt vmcnt(0)")
    A(f"v_cmp_gt_u32 vcc, 16, v{T}")
    A("s_and_b32 s43, vcc_lo, 0xffff"); A("s_cbranch_scc0 L_aok")
    A("s_sleep 32")
    A("s_add_u32 s53, s53, 1"); A(f"s_cmp_ge_u32 s53, {SPIN}"); A("s_cbranch_scc1 L_end")
    A("s_branch L_apoll")
    A("L_aok:")
    if 'F' in dbg: A("s_branch L_nored1")
    A("s_cmp_lg_u32 s41, 1"); A("s_cbranch_scc1 L_noffn2")
    A("v_lshlrev_b32 v8, 11, v4")
    A("s_lshl_b32 s43, s57, 4"); A(f"s_add_u32 s43, s43, {INB2F}"); A(f"s_add_u32 s52, s43, {64*2048}")
    scatter(8,"s43","s52")
    A("L_noffn2:")
    def red64(a):
        merge4(a,a+1,a+2,a+3)
        for ctl in ("row_ror:8","row_ror:4","row_ror:2","row_ror:1"): dpp("v_add_f32",a,a,a,ctl)
    def anyneg(rs,t):
        A(f"v_max3_u32 v{t}, v{rs[0]}, v{rs[1]}, v{rs[2]}")
        rs=rs[3:]
        while len(rs)>=2:
            A(f"v_max3_u32 v{t}, v{t}, v{rs[0]}, v{rs[1]}"); rs=rs[2:]
        if rs: A(f"v_max_u32 v{t}, v{t}, v{rs[0]}")
        A(f"v_cmp_eq_u32 vcc, -1, v{t}")
    A("s_cmp_lg_u32 s41, 2"); A("s_cbranch_scc1 L_nored1")
    A("s_lshr_b32 s43, s57, 3"); A("s_lshl_b32 s43, s43, 5"); A("s_and_b32 s52, s57, 7"); A("s_add_u32 s43, s43, s52"); A("s_lshl_b32 s43, s43, 1")
    A("v_lshlrev_b32 v9, 4, v7"); A("v_add_u32 v9, s43, v9")
    A(f"v_mov_b32 v{XC}, 0")
    A(f"buffer_load_short_d16_hi v{XC}, v9, s[28:31], 0 offen")
    for r in range(4): A(f"v_mov_b32 v{AB+r}, 0")
    A("s_mov_b32 s53, 0")
    A("L_fpoll:")
    A(f"buffer_load_dwordx4 v[{AA}:{AA+3}], v{vL16}, s[36:39], s55 offen sc1")
    A("s_mov_b32 exec_hi, 0x0000ffff")
    A(f"buffer_load_dwordx4 v[{AB}:{AB+3}], v{vL16}, s[36:39], s55 offen offset:1024 sc1")
    A("s_mov_b64 exec, -1")
    A("s_waitcnt vmcnt(0)")
    anyneg([AA,AA+1,AA+2,AA+3,AB,AB+1,AB+2,AB+3],T)
    A("s_cbranch_vccz L_fok")
    A("s_sleep 32")
    A("s_add_u32 s53, s53, 1"); A(f"s_cmp_ge_u32 s53, {SPIN}"); A("s_cbranch_scc1 L_end")
    A("s_branch L_fpoll")
    A("L_fok:")
    for r in range(4): A(f"v_add_f32 v{AA+r}, v{AA+r}, v{AB+r}")
    red64(AA)
    A(f"v_cvt_pk_bf16_f32 v{BF}, v{AA}, v{AA}"); A(f"v_and_b32 v{BF}, 0xffff0000, v{BF}")
    A("L_nored1:")
    srd(28,22,900)
    srd(32,12,4096*896)
    A("v_mul_u32_u24 v8, 7168, v7"); A("v_add_u32 v8, v8, v5")
    A("s_lshl_b32 s43, s60, 8"); A("s_bfe_u32 s52, s61, 0x10001"); A("s_lshl_b32 s52, s52, 7"); A("s_add_u32 s43, s43, s52")
    A("s_lshr_b32 s52, s61, 2"); A("s_lshl_b32 s52, s52, 5"); A("s_add_u32 s43, s43, s52")
    A("s_and_b32 s52, s61, 1"); A("s_lshl_b32 s52, s52, 2"); A("s_add_u32 s43, s43, s52"); A("s_mul_i32 s49, s43, 896")
    wol=lambda: rowloads(WO,8,"s[32:35]",[("s49",896*u) for u in range(4)],NT)
    if not latewo: wol()
    A("v_lshlrev_b32 v4, 12, v4")
    A("v_lshrrev_b32 v5, 2, v0"); A("v_and_b32 v6, 3, v0"); A("v_lshlrev_b32 v6, 4, v6"); A("v_lshl_add_u32 v6, v5, 11, v6")
    A("v_lshlrev_b32 v5, 3, v5")
    A("v_lshlrev_b32 v2, 11, v0")
    A("s_lshl_b32 s43, s60, 15"); A(f"s_add_u32 s43, s43, {INB1}"); A("s_lshl_b32 s52, s61, 6"); A("s_add_u32 s59, s43, s52")
    A("s_lshl_b32 s52, s61, 3"); A("s_add_u32 s63, s43, s52")
    A("s_lshl_b32 s43, s2, 4"); A(f"s_add_u32 s55, s43, {INB2}"); A(f"s_add_u32 s48, s55, {64*4096}")
    A("v_mov_b32 v1, 0")
    stamp(4)
    if DYN:
        TK=240
        A("s_mov_b64 exec, 1")
        A("s_waitcnt vmcnt(0)")
        A("s_barrier")
        def atomic(i):
            A(f"v_mov_b32 v{TK+i}, 1")
            A(f"buffer_atomic_add v{TK+i}, v1, s[36:39], s54 offen sc0")
        for i in range(LA): atomic(i)
        A("s_mov_b32 s53, 0"); A("s_mov_b32 s52, 0")
        A("L_tloop:")
        per=LA*2//math.gcd(LA,2)
        par0=(S-extras-RT)%2
        for q in range(per):
            i=q%LA
            A(f"s_waitcnt vmcnt({LA-1})")
            A(f"ds_write_b32 v1, v{TK+i} offset:{512+4*((q+par0)%2)}")
            A(f"v_readfirstlane_b32 s43, v{TK+i}")
            A("s_waitcnt lgkmcnt(0)")
            atomic(i)
            A("s_barrier")
            A("s_add_u32 s52, s52, 1"); A(f"s_cmp_ge_u32 s52, {1200-S+1}"); A(f"s_cselect_b32 s43, {POOL}, s43")
            A(f"s_cmp_ge_u32 s43, {POOL}"); A("s_addc_u32 s53, s53, 0")
            A(f"s_cmp_ge_u32 s53, {RT}"); A("s_cbranch_scc1 L_tdone")
        A("s_branch L_tloop")
        A("L_tdone:")
        A("s_mov_b64 exec, -1")
    A("s_barrier")
    stamp(5)
    O=AA; ML=T
    for w in range(4): A(f"ds_read_b128 v[{O+4*w}:{O+4*w+3}], v{vL16} offset:{1024+1024*w}")
    A(f"ds_read_b128 v[{ML}:{ML+3}], v1 offset:640"); A(f"ds_read_b128 v[{ML+4}:{ML+7}], v1 offset:656")
    if latewo: wol()
    A("s_waitcnt lgkmcnt(0)")
    A(f"v_max3_f32 v{P}, v{ML}, v{ML+2}, v{ML+4}"); A(f"v_max_f32 v{P}, v{P}, v{ML+6}")
    for w in range(4): A(f"v_sub_f32 v{ML+2*w}, v{ML+2*w}, v{P}")
    for w in range(4): A(f"v_mul_f32 v{ML+2*w}, s40, v{ML+2*w}")
    for w in range(4): A(f"v_exp_f32 v{ML+2*w}, v{ML+2*w}")
    A(f"v_mul_f32 v{P+1}, v{ML}, v{ML+1}")
    for r in range(4): A(f"v_mul_f32 v{O+r}, v{ML}, v{O+r}")
    for w in range(1,4):
        for r in range(4): A(f"v_fmac_f32 v{O+r}, v{ML+2*w}, v{O+4*w+r}")
        A(f"v_fmac_f32 v{P+1}, v{ML+2*w}, v{ML+2*w+1}")
    for r in range(4): A(f"v_min_u32 v{O+r}, -2, v{O+r}")
    A(f"buffer_store_dwordx4 v[{O}:{O+3}], v6, s[36:39], s59 offen sc1")
    A(f"v_min_u32 v{P}, -2, v{P}"); A(f"v_min_u32 v{P+1}, -2, v{P+1}")
    A("s_mov_b64 exec, 0xffff")
    A(f"buffer_store_dwordx2 v[{P}:{P+1}], v2, s[36:39], s63 offen offset:1024 sc1")
    A("s_mov_b64 exec, -1")
    A("s_mov_b32 s53, 0")
    O=AB
    A("L_poll1:")
    A(f"buffer_load_dwordx4 v[{O}:{O+3}], v{vL16}, s[36:39], s58 offen sc1")
    A(f"buffer_load_dwordx2 v[{O+4}:{O+5}], v5, s[36:39], s58 offen offset:1024 sc1")
    A("s_add_u32 s53, s53, 1"); A(f"s_cmp_ge_u32 s53, {SPIN}"); A("s_cbranch_scc1 L_end")
    A("s_waitcnt vmcnt(0)")
    anyneg([O,O+1,O+2,O+3,O+4,O+5],T)
    A("s_cbranch_vccnz L_poll1")
    stamp(6)
    dpp("v_max_f32",T,O+4,O+4,"row_ror:4"); dpp("v_max_f32",T,T,T,"row_ror:8"); xrow("v_max_f32",T,T+1)
    A(f"v_sub_f32 v{T}, v{O+4}, v{T}"); A(f"v_mul_f32 v{T}, s40, v{T}"); A(f"v_exp_f32 v{T}, v{T}")
    for r in range(4): A(f"v_mul_f32 v{O+r}, v{O+r}, v{T}")
    A(f"v_mul_f32 v{O+5}, v{O+5}, v{T}")
    merge4(O,O+1,O+2,O+3)
    xrow("v_add_f32",O+5,T+1)
    for ctl in ("row_ror:4","row_ror:8"):
        dpp("v_add_f32",O+5,O+5,O+5,ctl); dpp("v_add_f32",O,O,O,ctl)
    A(f"v_rcp_f32 v{O+5}, v{O+5}"); A(f"v_mul_f32 v{O}, v{O}, v{O+5}")
    A(f"v_cvt_pk_bf16_f32 v{O}, v{O}, v{O}")
    gemvB(WO,[(O,0),(O,1),(O,2),(O,3)]); scatter(4,"s55","s48")
    A("s_cmp_lg_u32 s41, 2"); A("s_cbranch_scc1 L_hend")
    A("s_mov_b32 s53, 0")
    O=AA
    A("L_poll2:")
    for k in range(4): A(f"buffer_load_dwordx4 v[{O+4*k}:{O+4*k+3}], v{vL16}, s[36:39], s56 offen offset:{1024*k} sc1")
    A("s_add_u32 s53, s53, 1"); A(f"s_cmp_ge_u32 s53, {SPIN}"); A("s_cbranch_scc1 L_end")
    A("s_waitcnt vmcnt(0)")
    anyneg([O+k for k in range(16)],T)
    A("s_cbranch_vccnz L_poll2")
    for r in range(4):
        A(f"v_add_f32 v{O+r}, v{O+r}, v{O+4+r}"); A(f"v_add_f32 v{O+8+r}, v{O+8+r}, v{O+12+r}")
    for r in range(4): A(f"v_add_f32 v{O+r}, v{O+r}, v{O+8+r}")
    red64(O)
    A(f"v_cvt_pk_bf16_f32 v{O}, v{O}, v{O}"); A(f"v_and_b32 v{O}, 0xffff0000, v{O}")
    A(f"v_add_f32 v{O}, v{XC}, v{O}")
    A(f"v_cvt_pk_bf16_f32 v{O}, v{O}, v{O}"); A(f"v_and_b32 v{O}, 0xffff0000, v{O}")
    A(f"v_add_f32 v{O}, v{O}, v{BF}")
    A(f"v_cvt_pk_bf16_f32 v{O}, v{O}, v{O}")
    A("s_mov_b32 exec_lo, 0x00010001"); A("s_mov_b32 exec_hi, 0x00010001")
    A(f"buffer_store_short v{O}, v9, s[28:31], 0 offen")
    A("L_hend:")
    stamp(7)
    write_stamps()
    A("L_end:")
    A("s_endpgm")
    A(f""".section .rodata,"a"
.p2align 6
.amdhsa_kernel {NAME}_kernel
  .amdhsa_next_free_vgpr 256
  .amdhsa_next_free_sgpr 96
  .amdhsa_accum_offset 256
  .amdhsa_group_segment_fixed_size 0
  .amdhsa_kernarg_size 96
  .amdhsa_user_sgpr_count 2
  .amdhsa_user_sgpr_kernarg_segment_ptr 1
  .amdhsa_system_sgpr_workgroup_id_x 1
.end_amdhsa_kernel""")
    body=pad(L)
    return "\n".join(body)+"\n"

if __name__=='__main__':
    kw={}
    out=sys.argv[1]
    for t in sys.argv[2:]:
        k,v=t.split('=')
        if k in('S','LA','extras'): v=int(v)
        elif k in('stamps','latewo'): v=bool(int(v))
        else: v=v.replace('_',' ')
        kw[k]=v
    open(out,'w').write(gen(**kw))
```

```python
import struct, sys, math
from asmlib import pad
NAME='parallel_sum__mha_block_cached__geglu_ffn__decode'
def f2h(x): return '0x%08x'%struct.unpack('<I',struct.pack('<f',x))[0]
C_SC=f2h(math.log2(math.e)/16)
QBUF=0x0; INB1=0x10000; INB2=0x100000; INB2F=0x180000; TICK=0x1C0000; WSN=0x200000
RB=16384
SPIN=1<<17

def gen(S=64, NT='nt', WNT='nt', stamps=False, LA=1, latewo=False, extras=None, header=True, RT=1, thr=None, pthr=None, b0=1, dbg='', MID=28, KNT=None, VNT=None, scr=0):
    L=[]; A=L.append
    DYN = S<64
    POOL=(64-S)*16
    KNT = NT if KNT is None else KNT.replace('none','')
    VNT = NT if VNT is None else VNT.replace('none','')
    WNT = WNT.replace('none','')
    if extras is None: extras=6-RT
    if thr is None: thr=4+(RT-1)*8
    if pthr is None: pthr=thr
    st=[0]
    def stamp(k):
        if stamps: A(f"s_memrealtime s[{64+2*k}:{65+2*k}]")
    def srd(b,p,n):
        A(f"s_mov_b32 s{b}, s{p}"); A(f"s_mov_b32 s{b+1}, s{p+1}"); A(f"s_mov_b32 s{b+2}, {n}"); A(f"s_mov_b32 s{b+3}, 0x00020000")
    def write_stamps():
        if stamps!=1: return
        A("s_waitcnt lgkmcnt(0)")
        A("s_mov_b32 s80, s26"); A("s_mov_b32 s81, s27"); A("s_mov_b32 s82, 0x40000000"); A("s_mov_b32 s83, 0x00020000")
        A("s_mul_i32 s84, s2, 5"); A("s_add_u32 s84, s84, s3"); A("s_lshl_b32 s84, s84, 6"); A("s_add_u32 s84, s84, 0x20000000")
        A("s_mov_b64 exec, 1"); A("v_mov_b32 v1, 0")
        for k in range(4):
            for i in range(4): A(f"v_mov_b32 v{4+i}, s{64+4*k+i}")
            A(f"buffer_store_dwordx4 v[4:7], v1, s[80:83], s84 offen offset:{16*k}")
            A("s_nop 1")
        A("s_waitcnt vmcnt(0)")
    def masks(b, tmp):
        A(f"v_and_b32 v{tmp}, 1, v0"); A(f"v_cmp_eq_u32 vcc, 1, v{tmp}")
        A(f"v_mov_b32 v{tmp}, 0xffff"); A(f"v_mov_b32 v{tmp+1}, 0xffff0000")
        A(f"v_cndmask_b32 v{tmp}, v{tmp}, v{tmp+1}, vcc")
        A(f"v_bfe_u32 v{tmp+1}, v0, 1, 2")
        for t in range(4):
            A(f"v_cmp_eq_u32 vcc, {t}, v{tmp+1}")
            A(f"v_cndmask_b32 v{b+t}, 0, v{tmp}, vcc")
    def dpp(op,d,a,b,ctl): A(f"{op}_dpp v{d}, v{a}, v{b} {ctl} row_mask:0xf bank_mask:0xf")
    def xrow(op,r,t):
        A(f"v_mov_b32 v{t}, v{r}"); A(f"v_permlane16_swap_b32 v{r}, v{t}"); A(f"{op} v{r}, v{r}, v{t}")
        A(f"v_mov_b32 v{t}, v{r}"); A(f"v_permlane32_swap_b32 v{r}, v{t}"); A(f"{op} v{r}, v{r}, v{t}")
    def merge4(a,b,c,d):
        A(f"v_permlane32_swap_b32 v{a}, v{c}"); A(f"v_permlane32_swap_b32 v{b}, v{d}")
        A(f"v_add_f32 v{a}, v{a}, v{c}"); A(f"v_add_f32 v{b}, v{b}, v{d}")
        A(f"v_permlane16_swap_b32 v{a}, v{b}"); A(f"v_add_f32 v{a}, v{a}, v{b}")

    if header:
        A("; decode block: x + attention(LN(x)) @ wo + GEGLU-FFN(LN(x)); one workgroup per CU, 4 streaming waves + 1 helper wave")
        A("; @launch grid=(256,1,1) block=(320,1,1) lds=8192")
    A('.amdgcn_target "amdgcn-amd-amdhsa--gfx950"')
    A(".text"); A(f".globl {NAME}_kernel"); A(".p2align 8"); A(f".type {NAME}_kernel,@function"); A(f"{NAME}_kernel:")
    if stamps:
        for k in range(1,8): A(f"s_mov_b64 s[{64+2*k}:{65+2*k}], 0")
    stamp(0)
    A("s_cmp_ge_u32 s2, 256"); A("s_cbranch_scc1 L_end")
    if scr:
        for bit,mask in ((0,12),(1,32),(2,24),(3,35),(4,33),(5,4),(0,48),(1,20),(3,6),(6,3),(7,5)):
            A(f"s_bitcmp1_b32 s2, {bit}"); A(f"s_cselect_b32 s3, {mask}, 0"); A("s_xor_b32 s2, s2, s3")
    A("s_load_dwordx16 s[4:19], s[0:1], 0")
    A("s_load_dwordx8 s[20:27], s[0:1], 64")
    A("v_lshrrev_b32 v1, 6, v0"); A("v_and_b32 v0, 63, v0"); A("v_readfirstlane_b32 s3, v1")
    A("s_lshr_b32 s60, s2, 4"); A("s_and_b32 s61, s2, 15")
    A(f"s_mov_b32 s40, {C_SC}")
    A("s_cmp_eq_u32 s3, 4"); A("s_cbranch_scc1 L_helper")

    vK,vV,vT=1,2,3; M=4; SEL=8; vm=9; vl=10; D=12; AC0=16; AC1=20; B0=24; B1=28; Q=32
    s0,s1,t0,t1,t2=48,49,50,51,52
    RING=[56+32*i for i in range(RT)]; EXT=[56+32*(RT+i) for i in range(extras)]
    A("v_and_b32 v1, 7, v0"); A("v_lshlrev_b32 v1, 9, v1")
    A("v_bfe_u32 v2, v0, 3, 1"); A("v_lshl_add_u32 v1, v2, 6, v1")
    A("v_lshrrev_b32 v3, 4, v0"); A("v_lshl_add_u32 v1, v3, 4, v1")
    A("v_bfe_u32 v2, v0, 4, 1"); A("v_lshlrev_b32 v2, 11, v2")
    A("v_lshrrev_b32 v3, 5, v0"); A("v_lshl_add_u32 v2, v3, 9, v2")
    A("v_and_b32 v3, 15, v0"); A("v_lshl_add_u32 v2, v3, 4, v2")
    A("s_lshl_b32 s41, s60, 24"); A("s_lshl_b32 s43, s3, 12"); A("s_add_u32 s41, s41, s43")
    A(f"s_mul_i32 s36, s61, {S*RB}"); A("s_add_u32 s36, s36, s41")
    A(f"s_add_u32 s41, s41, {16*S*RB}")
    A("s_waitcnt lgkmcnt(0)")
    srd(28,6,'0x10000000'); srd(32,8,'0x10000000')
    def kloads(b):
        for t in range(4): A(f"buffer_load_dwordx4 v[{b+4*t}:{b+4*t+3}], v{vK}, s[28:31], s36 offen offset:{128*t} {KNT}")
    def vloads(b):
        for u in range(4): A(f"buffer_load_dwordx4 v[{b+16+4*u}:{b+16+4*u+3}], v{vV}, s[32:35], s36 offen offset:{(u>>1)*1024+(u&1)*256} {VNT}")
    if b0==2: A("s_barrier")
    for n,b in enumerate(RING+EXT):
        if 8*n>pthr: A(f"s_waitcnt vmcnt({pthr})")
        kloads(b)
        if n==0:
            masks(M,t0)
            A(f"v_and_b32 v{t0}, 8, v0"); A(f"v_cmp_eq_u32 vcc, 8, v{t0}"); A(f"v_cndmask_b32 v{SEL}, 0, 1.0, vcc")
            A(f"v_mov_b32 v{vm}, 0xff7fffff"); A(f"v_mov_b32 v{vl}, 0")
            for r in range(8): A(f"v_mov_b32 v{AC0+r}, 0")
            A(f"v_and_b32 v{vT}, 1, v0"); A(f"v_lshlrev_b32 v{vT}, 6, v{vT}")
            A(f"v_lshrrev_b32 v{t0}, 4, v0"); A(f"v_lshl_add_u32 v{vT}, v{t0}, 4, v{vT}")
            if b0==1: A("s_barrier")
        if 8*n+4>pthr: A(f"s_waitcnt vmcnt({pthr})")
        vloads(b)
        A(f"s_add_u32 s36, s36, {RB}")
    A(f"s_mov_b32 s37, {RT+extras}"); A("s_mov_b32 s38, 1"); A("s_mov_b32 s39, 1"); A("s_mov_b32 s42, 1")
    stamp(1)
    A("s_barrier")
    for t in range(4): A(f"ds_read_b128 v[{Q+4*t}:{Q+4*t+3}], v{vT} offset:{128*t}")
    A(f"v_mov_b32 v{vT}, 0")
    A("s_waitcnt lgkmcnt(0)")
    stamp(2)
    uid=[0]
    def qk(b):
        for t in range(4):
            A(f"v_mfma_f32_16x16x32_bf16 v[{D}:{D+3}], v[{b+4*t}:{b+4*t+3}], v[{Q+4*t}:{Q+4*t+3}], "+("0" if t==0 else f"v[{D}:{D+3}]"))
    def softmax():
        uid[0]+=1; u=uid[0]
        A(f"v_permlane32_swap_b32 v{D}, v{D+1}"); A(f"v_permlane32_swap_b32 v{D+2}, v{D+3}")
        A(f"v_mov_b32_dpp v{t0}, v{D+1} quad_perm:[1,1,3,3] row_mask:0xf bank_mask:0xf")
        A(f"v_mov_b32_dpp v{t1}, v{D+3} quad_perm:[1,1,3,3] row_mask:0xf bank_mask:0xf")
        dpp("v_add_f32",s0,D,t0,"quad_perm:[0,0,2,2]"); dpp("v_add_f32",s1,D+2,t1,"quad_perm:[0,0,2,2]")
        A(f"v_cvt_pk_bf16_f32 v{t0}, v{s0}, v{s1}")
        A(f"v_lshlrev_b32 v{s0}, 16, v{t0}"); A(f"v_and_b32 v{s1}, 0xffff0000, v{t0}")
        A(f"v_max_f32 v{t1}, v{s0}, v{s1}")
        A(f"v_cmp_gt_f32 vcc, v{t1}, v{vm}")
        A(f"s_cbranch_vccz L_nomax{u}")
        xrow("v_max_f32",t1,t2)
        A(f"v_max_f32 v{t1}, v{t1}, v{vm}")
        A(f"v_sub_f32 v{t2}, v{vm}, v{t1}"); A(f"v_mul_f32 v{t2}, s40, v{t2}"); A(f"v_exp_f32 v{t2}, v{t2}")
        A(f"v_mov_b32 v{vm}, v{t1}")
        A(f"v_mul_f32 v{vl}, v{vl}, v{t2}")
        for r in range(8): A(f"v_mul_f32 v{AC0+r}, v{AC0+r}, v{t2}")
        A(f"L_nomax{u}:")
        A(f"v_sub_f32 v{s0}, v{s0}, v{vm}"); A(f"v_sub_f32 v{s1}, v{s1}, v{vm}")
        A(f"v_mul_f32 v{s0}, s40, v{s0}"); A(f"v_mul_f32 v{s1}, s40, v{s1}")
        A(f"v_exp_f32 v{s0}, v{s0}"); A(f"v_exp_f32 v{s1}, v{s1}")
        A(f"v_add_f32 v{vl}, v{vl}, v{s0}")
        A(f"v_cvt_pk_bf16_f32 v{t0}, v{s0}, v{s1}")
        A(f"v_add_f32 v{vl}, v{vl}, v{s1}")
        A(f"v_lshlrev_b32 v{t1}, 16, v{t0}"); A(f"v_and_b32 v{t2}, 0xffff0000, v{t0}")
        A(f"v_fma_f32 v{s0}, -v{t1}, v{SEL}, v{s0}"); A(f"v_fma_f32 v{s1}, -v{t2}, v{SEL}, v{s1}")
        A(f"v_cvt_pk_bf16_f32 v{t0}, v{s0}, v{s0}"); A(f"v_cvt_pk_bf16_f32 v{t1}, v{s1}, v{s1}")
        for t in range(4): A(f"v_and_b32 v{B0+t}, v{t0}, v{M+t}")
        for t in range(4): A(f"v_and_b32 v{B1+t}, v{t1}, v{M+t}")
    def pv(b):
        for u in range(4):
            ac=AC1 if (u&1) else AC0; bb=B1 if (u>>1) else B0
            A(f"v_mfma_f32_16x16x32_bf16 v[{ac}:{ac+3}], v[{b+16+4*u}:{b+16+4*u+3}], v[{bb}:{bb+3}], v[{ac}:{ac+3}]")
    A("L_loop:")
    for sl in range(2):
        b=RING[sl%RT]; fl=38+sl%RT
        A(f"s_cmp_eq_u32 s{fl}, 0"); A("s_cbranch_scc1 L_sdone")
        A(f"s_waitcnt vmcnt({thr})")
        qk(b)
        A(f"s_cmp_lt_u32 s37, {S}"); A(f"s_cbranch_scc1 L_st{sl}")
        if DYN:
            A("s_barrier")
            A(f"ds_read_b32 v{t0}, v{vT} offset:{512+4*sl}"); A("s_waitcnt lgkmcnt(0)")
            A(f"v_readfirstlane_b32 s43, v{t0}")
            A("s_cmp_ge_u32 s37, 1200"); A(f"s_cselect_b32 s43, {POOL}, s43")
            A(f"s_cmp_lt_u32 s43, {POOL}")
            A("s_cselect_b32 s30, 0x10000000, 0"); A("s_cselect_b32 s34, 0x10000000, 0"); A(f"s_cselect_b32 s{fl}, 1, 0")
            A(f"s_min_u32 s43, s43, {POOL-1}"); A("s_lshl_b32 s43, s43, 14"); A("s_add_u32 s36, s41, s43")
        else:
            A("s_mov_b32 s30, 0"); A("s_mov_b32 s34, 0"); A(f"s_mov_b32 s{fl}, 0"); A("s_mov_b32 s36, 0")
        A(f"L_st{sl}:")
        kloads(b)
        softmax()
        A(f"s_waitcnt vmcnt({thr})")
        pv(b)
        vloads(b)
        A(f"s_add_u32 s36, s36, {RB}"); A("s_add_u32 s37, s37, 1")
        if sl==(MID-1-extras-RT)%2:
            A(f"s_cmp_lg_u32 s37, {MID}"); A("s_cbranch_scc1 L_nomid"); A("s_barrier"); A("L_nomid:")
        if DYN and sl==(S-1-LA-extras-RT)%2:
            A(f"s_cmp_lg_u32 s37, {S-LA}"); A("s_cbranch_scc1 L_nokick"); A("s_barrier"); A("L_nokick:")
    A("s_cmp_eq_u32 s42, 0"); A("s_cbranch_scc1 L_loop")
    A("s_mov_b32 s42, 0")
    A("s_waitcnt vmcnt(16)")
    for b in EXT:
        qk(b); softmax(); pv(b)
    stamp(3)
    A("s_branch L_loop")
    A("L_sdone:")
    stamp(4)
    for r in range(8): dpp("v_add_f32",AC0+r,AC0+r,AC0+r,"row_ror:8")
    A("s_mov_b32 s46, 0xff00ff00"); A("s_mov_b32 s47, 0xff00ff00")
    for r in range(4): A(f"v_cndmask_b32 v{AC0+r}, v{AC0+r}, v{AC1+r}, s[46:47]")
    A("s_lshl_b32 s43, s3, 10"); A(f"v_lshl_add_u32 v{t0}, v0, 4, s43")
    A(f"ds_write_b128 v{t0}, v[{AC0}:{AC0+3}] offset:1024")
    xrow("v_add_f32",vl,t2)
    A("s_lshl_b32 s43, s3, 3"); A(f"v_mov_b32 v{t0}, s43")
    A(f"v_mov_b32 v{s0}, v{vm}"); A(f"v_mov_b32 v{s1}, v{vl}")
    A("s_mov_b64 exec, 1")
    A(f"ds_write_b64 v{t0}, v[{s0}:{s1}] offset:640")
    A("s_waitcnt lgkmcnt(0)")
    A("s_barrier")
    write_stamps()
    A("s_endpgm")

    X=10; XL=24; M=38; AA=42; AB=50; T=58; NEG=70; P=74; BB=78; DD=94; XC=110; BF=111; W1=112; W2=168; WD=112; WO=176
    vL16=3
    A("L_helper:")
    A("s_setprio 3")
    A("s_lshr_b32 s62, s2, 5"); A("s_lshl_b32 s62, s62, 3"); A("s_and_b32 s43, s2, 7"); A("s_add_u32 s62, s62, s43"); A("s_lshl_b32 s62, s62, 2")
    A("s_bfe_u32 s43, s2, 0x20003"); A("s_add_u32 s62, s62, s43")
    A("v_lshrrev_b32 v4, 1, v0"); A("v_lshlrev_b32 v1, 1, v4")
    A("v_and_b32 v5, 1, v0"); A("v_lshlrev_b32 v2, 13, v4"); A("v_lshl_add_u32 v2, v5, 4, v2")
    A("v_mul_u32_u24 v6, 3584, v4"); A("v_lshl_add_u32 v6, v5, 4, v6")
    A(f"v_lshlrev_b32 v{vL16}, 4, v0")
    A("v_lshrrev_b32 v7, 4, v0"); A("v_lshl_add_u32 v4, v5, 2, v7"); A("v_lshlrev_b32 v4, 3, v4")
    for u in range(14): A(f"v_mov_b32 v{X+u}, 0")
    for r in range(4): A(f"v_mov_b32 v{NEG+r}, -1")
    A("s_waitcnt lgkmcnt(0)")
    srd(28,4,900); srd(32,10,448*8192); srd(36,26,hex(WSN))
    A("s_lshl_b32 s63, s62, 6")
    A(f"buffer_load_dword v5, v4, s[36:39], s63 offen offset:{QBUF+4} sc1")
    A("s_lshl_b32 s59, s60, 10")
    A(f"buffer_load_dwordx4 v[{P}:{P+3}], v{vL16}, s[36:39], s59 offen offset:{QBUF} sc1")
    for u in range(14): A(f"buffer_load_short_d16_hi v{X+u}, v1, s[28:31], 0 offen offset:{64*u}")
    A("s_lshl_b32 s43, s62, 5")
    for u in range(14):
        A(f"buffer_load_dwordx4 v[{W1+4*u}:{W1+4*u+3}], v2, s[32:35], s43 offen {WNT}")
        if u<13: A("s_add_u32 s43, s43, 0x40000")
    if b0: A("s_barrier")
    A("s_lshl_b32 s43, s2, 11"); A(f"s_add_u32 s58, s43, {INB1}")
    A("s_and_b32 s42, s2, 7"); A("s_mul_i32 s57, s42, 14"); A("s_add_u32 s57, s57, s60")
    A("s_cmp_gt_u32 s60, s42"); A("s_subb_u32 s57, s57, 0")
    A("s_add_u32 s43, s42, 8"); A("s_cmp_gt_u32 s60, s43"); A("s_subb_u32 s57, s57, 0")
    A("s_bfe_u32 s41, s2, 0x10003"); A("s_add_u32 s41, s41, 1")
    A("s_and_b32 s43, s60, 7"); A("s_cmp_eq_u32 s43, s42"); A("s_cselect_b32 s41, 0, s41"); A("s_cselect_b32 s57, 0, s57")
    A("s_lshl_b32 s56, s57, 12"); A(f"s_add_u32 s56, s56, {INB2}")
    A("s_lshl_b32 s55, s57, 11"); A(f"s_add_u32 s55, s55, {INB2F}")
    A("s_lshl_b32 s54, s60, 8"); A(f"s_add_u32 s54, s54, {TICK}")
    def clears(lbl):
        if 'C' in dbg: return
        A(f"buffer_store_dwordx4 v[{NEG}:{NEG+3}], v{vL16}, s[36:39], s58 offen sc1")
        A("s_mov_b64 exec, 0xff")
        A(f"buffer_store_dwordx4 v[{NEG}:{NEG+3}], v{vL16}, s[36:39], s58 offen offset:1024 sc1")
        A("s_mov_b64 exec, -1")
        A("s_cmp_lg_u32 s41, 2"); A(f"s_cbranch_scc1 {lbl}a")
        for k in range(4): A(f"buffer_store_dwordx4 v[{NEG}:{NEG+3}], v{vL16}, s[36:39], s56 offen offset:{1024*k} sc1")
        for k in range(2): A(f"buffer_store_dwordx4 v[{NEG}:{NEG+3}], v{vL16}, s[36:39], s55 offen offset:{1024*k} sc1")
        A(f"{lbl}a:")
        if DYN:
            A("s_cmp_lg_u32 s61, 0"); A(f"s_cbranch_scc1 {lbl}b")
            A(f"v_mov_b32 v{T+6}, 0")
            A("s_mov_b64 exec, 1")
            A(f"buffer_store_dword v{T+6}, v{T+6}, s[36:39], s54 offen sc1")
            A("s_mov_b64 exec, -1")
            A(f"{lbl}b:")
        A("s_waitcnt vmcnt(0)")
    masks(M,T)
    def allred(r,t):
        dpp("v_add_f32",r,r,r,"quad_perm:[2,3,0,1]"); dpp("v_add_f32",r,r,r,"row_ror:4"); dpp("v_add_f32",r,r,r,"row_ror:8")
        xrow("v_add_f32",r,t)
    A("s_waitcnt vmcnt(14)")
    A(f"v_add_f32 v{T}, v{X}, v{X+1}"); A(f"v_add_f32 v{T+1}, v{X+2}, v{X+3}")
    for u in range(4,14,2):
        A(f"v_add_f32 v{T}, v{T}, v{X+u}"); A(f"v_add_f32 v{T+1}, v{T+1}, v{X+u+1}")
    A(f"v_add_f32 v{T}, v{T}, v{T+1}")
    allred(T,T+1)
    A(f"v_mul_f32 v{T}, {f2h(1/448)}, v{T}")
    for u in range(14): A(f"v_sub_f32 v{XL+u}, v{X+u}, v{T}")
    A(f"v_mul_f32 v{T+1}, v{XL}, v{XL}"); A(f"v_mul_f32 v{T+2}, v{XL+1}, v{XL+1}")
    for u in range(2,14,2):
        A(f"v_fmac_f32 v{T+1}, v{XL+u}, v{XL+u}"); A(f"v_fmac_f32 v{T+2}, v{XL+u+1}, v{XL+u+1}")
    A(f"v_add_f32 v{T+1}, v{T+1}, v{T+2}")
    allred(T+1,T+2)
    A(f"v_mul_f32 v{T+1}, {f2h(1/448)}, v{T+1}")
    A(f"v_cvt_pk_bf16_f32 v{T+2}, v{T}, v{T+1}")
    A(f"v_lshlrev_b32 v{T}, 16, v{T+2}"); A(f"v_and_b32 v{T+1}, 0xffff0000, v{T+2}")
    A(f"v_add_f32 v{T+1}, {f2h(1e-5)}, v{T+1}")
    A(f"v_cvt_pk_bf16_f32 v{T+1}, v{T+1}, v{T+1}"); A(f"v_and_b32 v{T+1}, 0xffff0000, v{T+1}")
    A(f"v_sqrt_f32 v{T+1}, v{T+1}")
    A(f"v_cvt_pk_bf16_f32 v{T+1}, v{T+1}, v{T+1}"); A(f"v_and_b32 v{T+1}, 0xffff0000, v{T+1}")
    A(f"v_rcp_f32 v{T+1}, v{T+1}")
    for u in range(0,14,2):
        a,b=X+u,X+u+1
        A(f"v_sub_f32 v{a}, v{a}, v{T}"); A(f"v_sub_f32 v{b}, v{b}, v{T}")
        A(f"v_cvt_pk_bf16_f32 v{T+2}, v{a}, v{b}")
        A(f"v_lshlrev_b32 v{a}, 16, v{T+2}"); A(f"v_and_b32 v{b}, 0xffff0000, v{T+2}")
        A(f"v_mul_f32 v{a}, v{a}, v{T+1}"); A(f"v_mul_f32 v{b}, v{b}, v{T+1}")
        A(f"v_cvt_pk_bf16_f32 v{T+2}, v{a}, v{b}")
        A(f"v_lshlrev_b32 v{a}, 16, v{T+2}"); A(f"v_and_b32 v{b}, 0xffff0000, v{T+2}")
        A(f"v_and_b32 v{XL+u}, 0xffff, v{T+2}"); A(f"v_lshrrev_b32 v{XL+u+1}, 16, v{T+2}")
    def gemvA(W,a,younger=None):
        for u in range(14):
            if younger is not None: A(f"s_waitcnt vmcnt({younger+13-u})")
            for t in range(4):
                A(f"v_dot2_f32_bf16 v{a+2*t}, v{W+4*u+t}, v{XL+u}, "+("0" if u==0 else f"v{a+2*t}"))
                A(f"v_dot2_f32_bf16 v{a+2*t+1}, v{W+4*u+t}, v{X+u}, "+("0" if u==0 else f"v{a+2*t+1}"))
        merge4(a,a+2,a+4,a+6); merge4(a+1,a+3,a+5,a+7)
        for ctl in ("quad_perm:[2,3,0,1]","row_ror:4","row_ror:8"):
            dpp("v_add_f32",a,a,a,ctl); dpp("v_add_f32",a+1,a+1,a+1,ctl)
    gemvA(W1,AA,0)
    A(f"v_cvt_pk_bf16_f32 v{T}, v{AA}, v{AA+1}"); A(f"v_add_u32 v{T+1}, 1, v5")
    A(f"v_add_u32 v8, 1, v{P+1}"); A(f"v_add_u32 v9, 1, v{P+3}")
    A("s_mov_b32 exec_lo, 0x00030003"); A("s_mov_b32 exec_hi, 0x00030003")
    A(f"buffer_store_dwordx2 v[{T}:{T+1}], v4, s[36:39], s63 offen offset:{QBUF} sc1")
    A("s_mov_b64 exec, -1")
    stamp(1)
    srd(40+4,24,256)
    A("s_lshr_b32 s43, s62, 4"); A("s_lshl_b32 s43, s43, 4"); A(f"v_mov_b32 v{T+2}, s43"); A(f"v_mov_b32 v{T+3}, 1")
    A("s_lshl_b32 s43, s60, 4"); A(f"v_mov_b32 v{T+4}, s43")
    A(f"buffer_load_dwordx4 v[{P}:{P+3}], v{vL16}, s[36:39], s59 offen offset:{QBUF} sc1")
    A("s_waitcnt vmcnt(0)")
    def arrive(lbl):
        A("s_cmp_lg_u32 s52, 0"); A(f"s_cbranch_scc1 {lbl}")
        A("s_mov_b32 s52, 1")
        clears(lbl)
        A("s_mov_b64 exec, 1")
        if 'A' not in dbg: A(f"buffer_atomic_add v{T+3}, v{T+2}, s[44:47], 0 offen")
        A("s_mov_b64 exec, -1")
        A(f"{lbl}:")
    A("s_mov_b32 s53, 0"); A("s_mov_b32 s52, 0")
    A("L_qpoll:")
    A(f"v_cmp_ne_u32 vcc, v8, v{P+1}"); A(f"v_cmp_ne_u32 s[48:49], v9, v{P+3}")
    A("s_or_b64 vcc, vcc, s[48:49]")
    A("s_cbranch_vccz L_qok")
    A("s_add_u32 s53, s53, 1")
    A("s_and_b32 s43, s53, 7"); A("s_cbranch_scc1 L_qld")
    A(f"s_cmp_ge_u32 s53, {SPIN}"); A("s_cbranch_scc1 L_end")
    arrive("L_arr1")
    A(f"buffer_load_dword v{T+5}, v{T+4}, s[44:47], 0 offen sc1"); A("s_waitcnt vmcnt(0)")
    A(f"v_cmp_gt_u32 vcc, 16, v{T+5}")
    A("s_cbranch_vccnz L_qld")
    A(f"buffer_load_dwordx4 v[{P}:{P+3}], v{vL16}, s[36:39], s59 offen offset:{QBUF} sc1"); A("s_waitcnt vmcnt(0)")
    A("s_branch L_qok")
    A("L_qld:")
    A(f"buffer_load_dwordx4 v[{P}:{P+3}], v{vL16}, s[36:39], s59 offen offset:{QBUF} sc1"); A("s_waitcnt vmcnt(0)")
    A("s_branch L_qpoll")
    A("L_qok:")
    A(f"v_mov_b32 v{P+1}, v{P+2}"); A(f"v_lshlrev_b32 v{T}, 3, v0")
    A(f"ds_write_b64 v{T}, v[{P}:{P+1}]")
    A("s_waitcnt lgkmcnt(0)")
    stamp(2)
    A("s_barrier")
    arrive("L_arr2")
    A("v_bfe_u32 v4, v0, 3, 1"); A("v_lshlrev_b32 v4, 5, v4"); A("v_lshrrev_b32 v7, 4, v0"); A("v_lshl_add_u32 v4, v7, 3, v4")
    A("v_and_b32 v5, 7, v0"); A("v_add_u32 v4, v4, v5")
    A("v_and_b32 v5, 15, v0"); A("v_lshlrev_b32 v5, 4, v5")
    A("s_mov_b32 s50, 0xff00ff00"); A("s_mov_b32 s51, 0xff00ff00")
    def rowloads(W,voff,srdr,soffs,flags):
        for cb in range(4):
            if cb==3: A("s_mov_b32 exec_lo, 0x00ff00ff"); A("s_mov_b32 exec_hi, 0x00ff00ff")
            for u in range(4):
                sg,im=soffs[u]
                A(f"buffer_load_dwordx4 v[{W+16*u+4*cb}:{W+16*u+4*cb+3}], v{voff}, {srdr}, {sg} offen offset:{im+256*cb} {flags}")
        A("s_mov_b64 exec, -1")
    def gemvB(W,srcs):
        for u,(r,k) in enumerate(srcs):
            for t in range(4): dpp("v_and_b32",BB+4*u+t,r,M+t,f"quad_perm:[{k},{k},{k},{k}]")
        for u in range(4):
            for cb in range(4):
                A(f"v_mfma_f32_16x16x32_bf16 v[{DD+4*cb}:{DD+4*cb+3}], v[{W+16*u+4*cb}:{W+16*u+4*cb+3}], v[{BB+4*u}:{BB+4*u+3}], "+("0" if u==0 else f"v[{DD+4*cb}:{DD+4*cb+3}]"))
    def scatter(voff,sbase,sbase2):
        for half in range(2):
            d=DD+8*half
            for r in range(4): A(f"v_cndmask_b32 v{d+r}, v{d+r}, v{d+4+r}, s[50:51]")
            for r in range(4): A(f"v_min_u32 v{d+r}, -2, v{d+r}")
            if half: A("s_mov_b32 exec_hi, 0x00ff00ff")
            A(f"buffer_store_dwordx4 v[{d}:{d+3}], v{voff}, s[36:39], {sbase2 if half else sbase} offen sc1")
        A("s_mov_b64 exec, -1")
    if 'F' in dbg: A("s_branch L_noffn")
    A("s_cmp_lg_u32 s41, 1"); A("s_cbranch_scc1 L_noffn")
    srd(32,16,448*3584)
    A("s_lshl_b32 s43, s57, 5")
    for u in range(14):
        A(f"buffer_load_dwordx4 v[{W1+4*u}:{W1+4*u+3}], v6, s[32:35], s43 offen {WNT}")
        if u<13: A(f"s_add_u32 s43, s43, {32*3584}")
    srd(32,18,448*3584)
    A("s_lshl_b32 s43, s57, 5")
    for u in range(14):
        A(f"buffer_load_dwordx4 v[{W2+4*u}:{W2+4*u+3}], v6, s[32:35], s43 offen {WNT}")
        if u<13: A(f"s_add_u32 s43, s43, {32*3584}")
    A("s_waitcnt vmcnt(14)")
    gemvA(W1,AA)
    A("s_waitcnt vmcnt(0)")
    gemvA(W2,AB)
    srd(32,20,1792*896)
    A("v_mul_u32_u24 v8, 1792, v7"); A("v_add_u32 v8, v8, v5")
    A(f"s_mul_i32 s43, s57, {16*896}"); A(f"s_add_u32 s52, s43, {8*896}")
    rowloads(WD,8,"s[32:35]",[("s43",0),("s43",896),("s52",0),("s52",896)],NT)
    A(f"v_cvt_pk_bf16_f32 v{T}, v{AA}, v{AA+1}"); A(f"v_cvt_pk_bf16_f32 v{T+1}, v{AB}, v{AB+1}")
    A(f"v_lshlrev_b32 v{AA}, 16, v{T}"); A(f"v_and_b32 v{AA+1}, 0xffff0000, v{T}")
    A(f"v_lshlrev_b32 v{AB}, 16, v{T+1}"); A(f"v_and_b32 v{AB+1}, 0xffff0000, v{T+1}")
    k0=math.sqrt(2/math.pi); k1=0.044715
    A(f"s_mov_b32 s48, {f2h(k1)}")
    for e in range(2):
        g=AA+e; t=T+2+e
        A(f"v_mul_f32 v{t}, v{g}, v{g}"); A(f"v_mul_f32 v{t}, v{t}, v{g}")
        A(f"v_fma_f32 v{t}, s48, v{t}, v{g}")
        A(f"v_mul_f32 v{t}, {f2h(-2*k0*math.log2(math.e))}, v{t}")
        A(f"v_exp_f32 v{t}, v{t}"); A(f"v_add_f32 v{t}, 1.0, v{t}"); A(f"v_rcp_f32 v{t}, v{t}")
        A(f"v_mul_f32 v{g}, v{g}, v{t}")
    A(f"v_cvt_pk_bf16_f32 v{T}, v{AA}, v{AA+1}")
    A(f"v_lshlrev_b32 v{AA}, 16, v{T}"); A(f"v_and_b32 v{AA+1}, 0xffff0000, v{T}")
    A(f"v_mul_f32 v{AA}, v{AA}, v{AB}"); A(f"v_mul_f32 v{AA+1}, v{AA+1}, v{AB+1}")
    A(f"v_cvt_pk_bf16_f32 v{AA}, v{AA}, v{AA}"); A(f"v_cvt_pk_bf16_f32 v{AA+1}, v{AA+1}, v{AA+1}")
    A("s_waitcnt vmcnt(0)")
    gemvB(WD,[(AA,0),(AA+1,0),(AA,1),(AA+1,1)])
    A("L_noffn:")
    stamp(3)
    A("s_barrier")
    if 'A' in dbg: A("s_branch L_aok")
    A("s_mov_b32 s53, 0")
    A("L_apoll:")
    A(f"buffer_load_dword v{T}, v{vL16}, s[44:47], 0 offen sc1"); A("s_waitcnt vmcnt(0)")
    A(f"v_cmp_gt_u32 vcc, 16, v{T}")
    A("s_and_b32 s43, vcc_lo, 0xffff"); A("s_cbranch_scc0 L_aok")
    A("s_sleep 32")
    A("s_add_u32 s53, s53, 1"); A(f"s_cmp_ge_u32 s53, {SPIN}"); A("s_cbranch_scc1 L_end")
    A("s_branch L_apoll")
    A("L_aok:")
    if 'F' in dbg: A("s_branch L_nored1")
    A("s_cmp_lg_u32 s41, 1"); A("s_cbranch_scc1 L_noffn2")
    A("v_lshlrev_b32 v8, 11, v4")
    A("s_lshl_b32 s43, s57, 4"); A(f"s_add_u32 s43, s43, {INB2F}"); A(f"s_add_u32 s52, s43, {64*2048}")
    scatter(8,"s43","s52")
    A("L_noffn2:")
    def red64(a):
        merge4(a,a+1,a+2,a+3)
        for ctl in ("row_ror:8","row_ror:4","row_ror:2","row_ror:1"): dpp("v_add_f32",a,a,a,ctl)
    def anyneg(rs,t):
        A(f"v_max3_u32 v{t}, v{rs[0]}, v{rs[1]}, v{rs[2]}")
        rs=rs[3:]
        while len(rs)>=2:
            A(f"v_max3_u32 v{t}, v{t}, v{rs[0]}, v{rs[1]}"); rs=rs[2:]
        if rs: A(f"v_max_u32 v{t}, v{t}, v{rs[0]}")
        A(f"v_cmp_eq_u32 vcc, -1, v{t}")
    A("s_cmp_lg_u32 s41, 2"); A("s_cbranch_scc1 L_nored1")
    A("s_lshr_b32 s43, s57, 3"); A("s_lshl_b32 s43, s43, 5"); A("s_and_b32 s52, s57, 7"); A("s_add_u32 s43, s43, s52"); A("s_lshl_b32 s43, s43, 1")
    A("v_lshlrev_b32 v9, 4, v7"); A("v_add_u32 v9, s43, v9")
    A(f"v_mov_b32 v{XC}, 0")
    A(f"buffer_load_short_d16_hi v{XC}, v9, s[28:31], 0 offen")
    for r in range(4): A(f"v_mov_b32 v{AB+r}, 0")
    A("s_mov_b32 s53, 0")
    A("L_fpoll:")
    A(f"buffer_load_dwordx4 v[{AA}:{AA+3}], v{vL16}, s[36:39], s55 offen sc1")
    A("s_mov_b32 exec_hi, 0x0000ffff")
    A(f"buffer_load_dwordx4 v[{AB}:{AB+3}], v{vL16}, s[36:39], s55 offen offset:1024 sc1")
    A("s_mov_b64 exec, -1")
    A("s_waitcnt vmcnt(0)")
    anyneg([AA,AA+1,AA+2,AA+3,AB,AB+1,AB+2,AB+3],T)
    A("s_cbranch_vccz L_fok")
    A("s_sleep 32")
    A("s_add_u32 s53, s53, 1"); A(f"s_cmp_ge_u32 s53, {SPIN}"); A("s_cbranch_scc1 L_end")
    A("s_branch L_fpoll")
    A("L_fok:")
    for r in range(4): A(f"v_add_f32 v{AA+r}, v{AA+r}, v{AB+r}")
    red64(AA)
    A(f"v_cvt_pk_bf16_f32 v{BF}, v{AA}, v{AA}"); A(f"v_and_b32 v{BF}, 0xffff0000, v{BF}")
    A("L_nored1:")
    srd(28,22,900)
    srd(32,12,4096*896)
    A("v_mul_u32_u24 v8, 7168, v7"); A("v_add_u32 v8, v8, v5")
    A("s_lshl_b32 s43, s60, 8"); A("s_bfe_u32 s52, s61, 0x10001"); A("s_lshl_b32 s52, s52, 7"); A("s_add_u32 s43, s43, s52")
    A("s_lshr_b32 s52, s61, 2"); A("s_lshl_b32 s52, s52, 5"); A("s_add_u32 s43, s43, s52")
    A("s_and_b32 s52, s61, 1"); A("s_lshl_b32 s52, s52, 2"); A("s_add_u32 s43, s43, s52"); A("s_mul_i32 s49, s43, 896")
    wol=lambda: rowloads(WO,8,"s[32:35]",[("s49",896*u) for u in range(4)],NT)
    if not latewo: wol()
    A("v_lshlrev_b32 v4, 12, v4")
    A("v_lshrrev_b32 v5, 2, v0"); A("v_and_b32 v6, 3, v0"); A("v_lshlrev_b32 v6, 4, v6"); A("v_lshl_add_u32 v6, v5, 11, v6")
    A("v_lshlrev_b32 v5, 3, v5")
    A("v_lshlrev_b32 v2, 11, v0")
    A("s_lshl_b32 s43, s60, 15"); A(f"s_add_u32 s43, s43, {INB1}"); A("s_lshl_b32 s52, s61, 6"); A("s_add_u32 s59, s43, s52")
    A("s_lshl_b32 s52, s61, 3"); A("s_add_u32 s63, s43, s52")
    A("s_lshl_b32 s43, s2, 4"); A(f"s_add_u32 s55, s43, {INB2}"); A(f"s_add_u32 s48, s55, {64*4096}")
    A("v_mov_b32 v1, 0")
    stamp(4)
    if DYN:
        TK=240
        A("s_mov_b64 exec, 1")
        A("s_waitcnt vmcnt(0)")
        A("s_barrier")
        def atomic(i):
            A(f"v_mov_b32 v{TK+i}, 1")
            A(f"buffer_atomic_add v{TK+i}, v1, s[36:39], s54 offen sc0")
        for i in range(LA): atomic(i)
        A("s_mov_b32 s53, 0"); A("s_mov_b32 s52, 0")
        A("L_tloop:")
        per=LA*2//math.gcd(LA,2)
        par0=(S-extras-RT)%2
        for q in range(per):
            i=q%LA
            A(f"s_waitcnt vmcnt({LA-1})")
            A(f"ds_write_b32 v1, v{TK+i} offset:{512+4*((q+par0)%2)}")
            A(f"v_readfirstlane_b32 s43, v{TK+i}")
            A("s_waitcnt lgkmcnt(0)")
            atomic(i)
            A("s_barrier")
            A("s_add_u32 s52, s52, 1"); A(f"s_cmp_ge_u32 s52, {1200-S+1}"); A(f"s_cselect_b32 s43, {POOL}, s43")
            A(f"s_cmp_ge_u32 s43, {POOL}"); A("s_addc_u32 s53, s53, 0")
            A(f"s_cmp_ge_u32 s53, {RT}"); A("s_cbranch_scc1 L_tdone")
        A("s_branch L_tloop")
        A("L_tdone:")
        A("s_mov_b64 exec, -1")
    A("s_barrier")
    stamp(5)
    O=AA; ML=T
    for w in range(4): A(f"ds_read_b128 v[{O+4*w}:{O+4*w+3}], v{vL16} offset:{1024+1024*w}")
    A(f"ds_read_b128 v[{ML}:{ML+3}], v1 offset:640"); A(f"ds_read_b128 v[{ML+4}:{ML+7}], v1 offset:656")
    if latewo: wol()
    A("s_waitcnt lgkmcnt(0)")
    A(f"v_max3_f32 v{P}, v{ML}, v{ML+2}, v{ML+4}"); A(f"v_max_f32 v{P}, v{P}, v{ML+6}")
    for w in range(4): A(f"v_sub_f32 v{ML+2*w}, v{ML+2*w}, v{P}")
    for w in range(4): A(f"v_mul_f32 v{ML+2*w}, s40, v{ML+2*w}")
    for w in range(4): A(f"v_exp_f32 v{ML+2*w}, v{ML+2*w}")
    A(f"v_mul_f32 v{P+1}, v{ML}, v{ML+1}")
    for r in range(4): A(f"v_mul_f32 v{O+r}, v{ML}, v{O+r}")
    for w in range(1,4):
        for r in range(4): A(f"v_fmac_f32 v{O+r}, v{ML+2*w}, v{O+4*w+r}")
        A(f"v_fmac_f32 v{P+1}, v{ML+2*w}, v{ML+2*w+1}")
    for r in range(4): A(f"v_min_u32 v{O+r}, -2, v{O+r}")
    A(f"buffer_store_dwordx4 v[{O}:{O+3}], v6, s[36:39], s59 offen sc1")
    A(f"v_min_u32 v{P}, -2, v{P}"); A(f"v_min_u32 v{P+1}, -2, v{P+1}")
    A("s_mov_b64 exec, 0xffff")
    A(f"buffer_store_dwordx2 v[{P}:{P+1}], v2, s[36:39], s63 offen offset:1024 sc1")
    A("s_mov_b64 exec, -1")
    A("s_mov_b32 s53, 0")
    O=AB
    A("L_poll1:")
    A(f"buffer_load_dwordx4 v[{O}:{O+3}], v{vL16}, s[36:39], s58 offen sc1")
    A(f"buffer_load_dwordx2 v[{O+4}:{O+5}], v5, s[36:39], s58 offen offset:1024 sc1")
    A("s_add_u32 s53, s53, 1"); A(f"s_cmp_ge_u32 s53, {SPIN}"); A("s_cbranch_scc1 L_end")
    A("s_waitcnt vmcnt(0)")
    anyneg([O,O+1,O+2,O+3,O+4,O+5],T)
    A("s_cbranch_vccnz L_poll1")
    stamp(6)
    dpp("v_max_f32",T,O+4,O+4,"row_ror:4"); dpp("v_max_f32",T,T,T,"row_ror:8"); xrow("v_max_f32",T,T+1)
    A(f"v_sub_f32 v{T}, v{O+4}, v{T}"); A(f"v_mul_f32 v{T}, s40, v{T}"); A(f"v_exp_f32 v{T}, v{T}")
    for r in range(4): A(f"v_mul_f32 v{O+r}, v{O+r}, v{T}")
    A(f"v_mul_f32 v{O+5}, v{O+5}, v{T}")
    merge4(O,O+1,O+2,O+3)
    xrow("v_add_f32",O+5,T+1)
    for ctl in ("row_ror:4","row_ror:8"):
        dpp("v_add_f32",O+5,O+5,O+5,ctl); dpp("v_add_f32",O,O,O,ctl)
    A(f"v_rcp_f32 v{O+5}, v{O+5}"); A(f"v_mul_f32 v{O}, v{O}, v{O+5}")
    A(f"v_cvt_pk_bf16_f32 v{O}, v{O}, v{O}")
    gemvB(WO,[(O,0),(O,1),(O,2),(O,3)]); scatter(4,"s55","s48")
    A("s_cmp_lg_u32 s41, 2"); A("s_cbranch_scc1 L_hend")
    A("s_mov_b32 s53, 0")
    O=AA
    A("L_poll2:")
    for k in range(4): A(f"buffer_load_dwordx4 v[{O+4*k}:{O+4*k+3}], v{vL16}, s[36:39], s56 offen offset:{1024*k} sc1")
    A("s_add_u32 s53, s53, 1"); A(f"s_cmp_ge_u32 s53, {SPIN}"); A("s_cbranch_scc1 L_end")
    A("s_waitcnt vmcnt(0)")
    anyneg([O+k for k in range(16)],T)
    A("s_cbranch_vccnz L_poll2")
    for r in range(4):
        A(f"v_add_f32 v{O+r}, v{O+r}, v{O+4+r}"); A(f"v_add_f32 v{O+8+r}, v{O+8+r}, v{O+12+r}")
    for r in range(4): A(f"v_add_f32 v{O+r}, v{O+r}, v{O+8+r}")
    red64(O)
    A(f"v_cvt_pk_bf16_f32 v{O}, v{O}, v{O}"); A(f"v_and_b32 v{O}, 0xffff0000, v{O}")
    A(f"v_add_f32 v{O}, v{XC}, v{O}")
    A(f"v_cvt_pk_bf16_f32 v{O}, v{O}, v{O}"); A(f"v_and_b32 v{O}, 0xffff0000, v{O}")
    A(f"v_add_f32 v{O}, v{O}, v{BF}")
    A(f"v_cvt_pk_bf16_f32 v{O}, v{O}, v{O}")
    A("s_mov_b32 exec_lo, 0x00010001"); A("s_mov_b32 exec_hi, 0x00010001")
    A(f"buffer_store_short v{O}, v9, s[28:31], 0 offen")
    A("L_hend:")
    stamp(7)
    if stamps==2:
        A("s_waitcnt lgkmcnt(0)")
        A("s_mov_b64 exec, 1")
        for k in (7,5,2):
            A(f"s_sub_u32 s43, s{64+2*k}, s64"); A("v_mov_b32 v4, s43"); A("v_mov_b32 v5, 0")
            A(f"buffer_atomic_umax v4, v5, s[44:47], 0 offen offset:{ {7:4,5:8,2:12}[k] }")
    write_stamps()
    A("L_end:")
    A("s_endpgm")
    A(f""".section .rodata,"a"
.p2align 6
.amdhsa_kernel {NAME}_kernel
  .amdhsa_next_free_vgpr 256
  .amdhsa_next_free_sgpr 96
  .amdhsa_accum_offset 256
  .amdhsa_group_segment_fixed_size 0
  .amdhsa_kernarg_size 96
  .amdhsa_user_sgpr_count 2
  .amdhsa_user_sgpr_kernarg_segment_ptr 1
  .amdhsa_system_sgpr_workgroup_id_x 1
.end_amdhsa_kernel""")
    body=pad(L)
    return "\n".join(body)+"\n"

if __name__=='__main__':
    kw={}
    out=sys.argv[1]
    for t in sys.argv[2:]:
        k,v=t.split('=')
        if k in('S','LA','extras'): v=int(v)
        elif k in('stamps','latewo'): v=bool(int(v))
        else: v=v.replace('_',' ')
        kw[k]=v
    open(out,'w').write(gen(**kw))
```

```python
import struct, sys, math
from asmlib import pad
NAME='parallel_sum__mha_block_cached__geglu_ffn__decode'
def f2h(x): return '0x%08x'%struct.unpack('<I',struct.pack('<f',x))[0]
C_SC=f2h(math.log2(math.e)/16)
QBUF=0x0; INB1=0x10000; PFB=0x60000; INB2=0x80000; TICK=0xC0000; HDR=0xC8000; SCB=0xD0000; WSN=0x120000
L_TK=512; L_MH=520; L_M=656; L_KK=672; L_O=1024; L_SC=5120; L_XN=9728; LDSN=11520
SPIN=1<<17

HEADER='''; out = x + attention(LN(x)) @ wo + GEGLU-FFN(LN(x)): one decode token, 16 heads x 32768 cached keys x 256 dims.
'''

def gen(S=56, KICK=2, extras=10, NT='nt', stamps=0, dbg='', QTRY=32, zthr=0, f0=0):
    L=[]; A=L.append
    NP=64-S; POOL=NP*16; TMAX=1100
    assert S%2==0 and extras%2==0 and KICK%2==0 and 2+2*extras+4<64 and KICK<S<=62 and NP<=16
    assert SCB+16*POOL*64<=WSN
    def stamp(k):
        if stamps: A(f"s_memrealtime s[{64+2*k}:{65+2*k}]")
    def srd(b,p,n):
        A(f"s_mov_b32 s{b}, s{p}"); A(f"s_mov_b32 s{b+1}, s{p+1}"); A(f"s_mov_b32 s{b+2}, {n}"); A(f"s_mov_b32 s{b+3}, 0x00020000")
    def setexec(m):
        A(f"s_mov_b32 exec_lo, {hex(m&0xffffffff)}"); A(f"s_mov_b32 exec_hi, {hex(m>>32)}")
    def write_stamps():
        if stamps!=1: return
        A("s_waitcnt lgkmcnt(0)")
        A("s_mov_b32 s80, s26"); A("s_mov_b32 s81, s27"); A("s_mov_b32 s82, 0x40000000"); A("s_mov_b32 s83, 0x00020000")
        A("s_mul_i32 s84, s2, 5"); A("s_add_u32 s84, s84, s3"); A("s_lshl_b32 s84, s84, 6"); A("s_add_u32 s84, s84, 0x20000000")
        A("s_mov_b64 exec, 1"); A("v_mov_b32 v1, 0")
        for k in range(4):
            for i in range(4): A(f"v_mov_b32 v{4+i}, s{64+4*k+i}")
            A(f"buffer_store_dwordx4 v[4:7], v1, s[80:83], s84 offen offset:{16*k}")
            A("s_nop 1")
        A("s_waitcnt vmcnt(0)")
    def masks(b, tmp):
        A(f"v_and_b32 v{tmp}, 1, v0"); A(f"v_cmp_eq_u32 vcc, 1, v{tmp}")
        A(f"v_mov_b32 v{tmp}, 0xffff"); A(f"v_mov_b32 v{tmp+1}, 0xffff0000")
        A(f"v_cndmask_b32 v{tmp}, v{tmp}, v{tmp+1}, vcc")
        A(f"v_bfe_u32 v{tmp+1}, v0, 1, 2")
        for t in range(4):
            A(f"v_cmp_eq_u32 vcc, {t}, v{tmp+1}")
            A(f"v_cndmask_b32 v{b+t}, 0, v{tmp}, vcc")
    def dpp(op,d,a,b,ctl): A(f"{op}_dpp v{d}, v{a}, v{b} {ctl} row_mask:0xf bank_mask:0xf")
    def xrow(op,r,t):
        A(f"v_mov_b32 v{t}, v{r}"); A(f"v_permlane16_swap_b32 v{r}, v{t}"); A(f"{op} v{r}, v{r}, v{t}")
        A(f"v_mov_b32 v{t}, v{r}"); A(f"v_permlane32_swap_b32 v{r}, v{t}"); A(f"{op} v{r}, v{r}, v{t}")
    def merge4(a,b,c,d):
        A(f"v_permlane32_swap_b32 v{a}, v{c}"); A(f"v_permlane32_swap_b32 v{b}, v{d}")
        A(f"v_add_f32 v{a}, v{a}, v{c}"); A(f"v_add_f32 v{b}, v{b}, v{d}")
        A(f"v_permlane16_swap_b32 v{a}, v{b}"); A(f"v_add_f32 v{a}, v{a}, v{b}")

    for l in HEADER.strip().split('\n'): A(l)
    A(f"; @launch grid=(256,1,1) block=(320,1,1) lds={LDSN}")
    A('.amdgcn_target "amdgcn-amd-amdhsa--gfx950"')
    A(".text"); A(f".globl {NAME}_kernel"); A(".p2align 8"); A(f".type {NAME}_kernel,@function"); A(f"{NAME}_kernel:")
    if stamps:
        for k in range(1,8): A(f"s_mov_b64 s[{64+2*k}:{65+2*k}], 0")
    stamp(0)
    A("s_cmp_ge_u32 s2, 256"); A("s_cbranch_scc1 L_end")
    A("s_load_dwordx16 s[4:19], s[0:1], 0")
    A("s_load_dwordx8 s[20:27], s[0:1], 64")
    A("v_lshrrev_b32 v1, 6, v0"); A("v_and_b32 v0, 63, v0"); A("v_readfirstlane_b32 s3, v1")
    A("s_lshr_b32 s60, s2, 4"); A("s_and_b32 s61, s2, 15")
    A(f"s_mov_b32 s40, {C_SC}")
    A("s_cmp_eq_u32 s3, 4"); A("s_cbranch_scc1 L_helper")

    vK,vV,vT=1,2,3; M=4; SEL=8; vm=9; vTK=10; vS=11; D=12; AC0=16; AC1=20; B0=24; B1=28; Q=32
    s0,s1,t0,t1,t2,vG=48,49,50,51,52,53; SCR=[54,55]
    SL=[56,72]; EXT=[88+16*i for i in range(extras)]
    A("v_and_b32 v1, 7, v0"); A("v_lshlrev_b32 v1, 9, v1")
    A("v_bfe_u32 v2, v0, 3, 1"); A("v_lshl_add_u32 v1, v2, 6, v1")
    A("v_lshrrev_b32 v3, 4, v0"); A("v_lshl_add_u32 v1, v3, 4, v1")
    A("s_lshl_b32 s41, s60, 24"); A("s_lshl_b32 s43, s3, 12"); A("s_add_u32 s41, s41, s43")
    roff=lambda n: ((n&1)<<14)+((n>>1)<<16)
    A("s_and_b32 s39, s61, 7"); A("s_lshl_b32 s39, s39, 21"); A("s_add_u32 s39, s39, s41")
    A("s_lshr_b32 s43, s61, 3"); A("s_lshl_b32 s43, s43, 15"); A("s_add_u32 s39, s39, s43")
    A("s_mov_b32 s36, s39")
    A("s_waitcnt lgkmcnt(0)")
    srd(28,6,'0x10000000')
    def kl(b,h):
        for t in (2*h,2*h+1): A(f"buffer_load_dwordx4 v[{b+4*t}:{b+4*t+3}], v{vK}, s[28:31], s36 offen offset:{128*t} {NT}")
    def vl(b,h):
        for u in (2*h,2*h+1): A(f"buffer_load_dwordx4 v[{b+4*u}:{b+4*u+3}], v{vV}, s[32:35], s36 offen offset:{(u>>1)*1024+(u&1)*256} {NT}")
    def adv(n): A(f"s_add_u32 s36, s36, {roff(n+1)-roff(n)}")
    nl=0
    for n,b in enumerate(SL+EXT):
        for h in range(2):
            if n==1 and h==1: continue
            if nl>4: A("s_waitcnt vmcnt(4)")
            kl(b,h); nl+=2
        adv(n)
        if n==0:
            srd(32,8,'0x10000000'); srd(48,26,hex(WSN))
            A(f"s_add_u32 s41, s41, {roff(S)}")
            A(f"s_mul_i32 s52, s60, {POOL*64}"); A("s_lshl_b32 s43, s3, 4"); A("s_add_u32 s52, s52, s43"); A(f"s_add_u32 s52, s52, {SCB}")
            A("v_bfe_u32 v2, v0, 4, 1"); A("v_lshlrev_b32 v2, 11, v2")
            A("v_lshrrev_b32 v3, 5, v0"); A("v_lshl_add_u32 v2, v3, 9, v2")
            A("v_and_b32 v3, 15, v0"); A("v_lshl_add_u32 v2, v3, 4, v2")
            masks(M,t0)
            A(f"v_and_b32 v{t0}, 8, v0"); A(f"v_cmp_eq_u32 vcc, 8, v{t0}"); A(f"v_cndmask_b32 v{SEL}, 0, 1.0, vcc")
            A(f"v_mov_b32 v{vm}, 0xff7fffff")
            for r in range(8): A(f"v_mov_b32 v{AC0+r}, 0")
            A(f"v_and_b32 v{vT}, 1, v0"); A(f"v_lshlrev_b32 v{vT}, 6, v{vT}")
            A(f"v_lshrrev_b32 v{t0}, 4, v0"); A(f"v_lshl_add_u32 v{vT}, v{t0}, 4, v{vT}")
            A(f"v_lshlrev_b32 v{vG}, 2, v{t0}")
            A("s_lshl_b32 s43, s3, 10"); A(f"s_add_u32 s53, s43, {L_SC}"); A(f"v_add_u32 v{vS}, s53, v{vG}")
            A("s_mov_b32 s44, 0x00010001"); A("s_mov_b32 s45, 0x00010001")
            A("s_barrier")
    A(f"s_add_u32 s36, s39, {roff(1)}")
    stamp(1)
    A("s_barrier")
    for t in range(4): A(f"ds_read_b128 v[{Q+4*t}:{Q+4*t+3}], v{vT} offset:{128*t}")
    A(f"v_mov_b32 v{vT}, 0")
    A("s_waitcnt lgkmcnt(0)")
    stamp(2)
    def qk(b,hs=(0,1)):
        for t in [t for h in hs for t in (2*h,2*h+1)]:
            A(f"v_mfma_f32_16x16x32_bf16 v[{D}:{D+3}], v[{b+4*t}:{b+4*t+3}], v[{Q+4*t}:{Q+4*t+3}], "+("0" if t==0 else f"v[{D}:{D+3}]"))
    def scores(off):
        A(f"v_permlane32_swap_b32 v{D}, v{D+1}"); A(f"v_permlane32_swap_b32 v{D+2}, v{D+3}")
        A(f"v_mov_b32_dpp v{t0}, v{D+1} quad_perm:[1,1,3,3] row_mask:0xf bank_mask:0xf")
        A(f"v_mov_b32_dpp v{t1}, v{D+3} quad_perm:[1,1,3,3] row_mask:0xf bank_mask:0xf")
        dpp("v_add_f32",s0,D,t0,"quad_perm:[0,0,2,2]"); dpp("v_add_f32",s1,D+2,t1,"quad_perm:[0,0,2,2]")
        A(f"v_cvt_pk_bf16_f32 v{t0}, v{s0}, v{s1}")
        A("s_mov_b64 exec, s[44:45]")
        A(f"ds_write_b32 v{vS}, v{t0} offset:{off}")
        A("s_mov_b64 exec, -1")
        A(f"v_lshlrev_b32 v{s0}, 16, v{t0}"); A(f"v_and_b32 v{s1}, 0xffff0000, v{t0}")
        A(f"v_max3_f32 v{vm}, v{s0}, v{s1}, v{vm}")
    def probs(src):
        A(f"v_lshlrev_b32 v{s0}, 16, v{src}"); A(f"v_and_b32 v{s1}, 0xffff0000, v{src}")
        A(f"v_sub_f32 v{s0}, v{s0}, v{vm}"); A(f"v_sub_f32 v{s1}, v{s1}, v{vm}")
        A(f"v_mul_f32 v{s0}, s40, v{s0}"); A(f"v_mul_f32 v{s1}, s40, v{s1}")
        A(f"v_exp_f32 v{s0}, v{s0}"); A(f"v_exp_f32 v{s1}, v{s1}")
        A(f"v_cvt_pk_bf16_f32 v{t0}, v{s0}, v{s1}")
        A(f"v_lshlrev_b32 v{t1}, 16, v{t0}"); A(f"v_and_b32 v{t2}, 0xffff0000, v{t0}")
        A(f"v_fma_f32 v{s0}, -v{t1}, v{SEL}, v{s0}"); A(f"v_fma_f32 v{s1}, -v{t2}, v{SEL}, v{s1}")
        A(f"v_cvt_pk_bf16_f32 v{t0}, v{s0}, v{s0}"); A(f"v_cvt_pk_bf16_f32 v{t1}, v{s1}, v{s1}")
        for t in range(4): A(f"v_and_b32 v{B0+t}, v{t0}, v{M+t}")
        for t in range(4): A(f"v_and_b32 v{B1+t}, v{t1}, v{M+t}")
    def pv(b,h):
        for u in (2*h,2*h+1):
            ac=AC1 if (u&1) else AC0; bb=B1 if (u>>1) else B0
            A(f"v_mfma_f32_16x16x32_bf16 v[{ac}:{ac+3}], v[{b+4*u}:{b+4*u+3}], v[{bb}:{bb+3}], v[{ac}:{ac+3}]")
    def kstep(sl,step,off):
        A("s_waitcnt vmcnt(4)")
        kl(SL[1-sl],1)
        A(f"s_add_u32 s36, s36, {step}")
        qk(SL[sl],(0,))
        A("s_waitcnt vmcnt(4)")
        kl(SL[sl],0)
        qk(SL[sl],(1,)); scores(off)
    STEP=(roff(2)-roff(1),roff(1))
    k=0; it=0
    while k<extras:
        for sl in range(2):
            first=(it==0 and sl==0)
            kstep(sl,roff(2+extras)-roff(1) if first else STEP[sl],16*(sl if it==0 else extras+2*it+sl))
            if not first and k<extras:
                qk(EXT[k]); scores(16*(2+k)); k+=1
        it+=1
    A(f"v_add_u32 v{vS}, {16*(extras+2*it)}, v{vS}")
    A(f"s_mov_b32 s37, {2+extras+2*it}")
    if 'R' not in dbg: stamp(3)
    A("L_loop1:")
    for sl in range(2): kstep(sl,STEP[sl],16*sl)
    A(f"v_add_u32 v{vS}, 32, v{vS}")
    A("s_add_u32 s37, s37, 2")
    if 'R' in dbg:
        A("s_cmp_lg_u32 s37, 28"); A("s_cbranch_scc1 L_r1"); stamp(1); A("L_r1:")
        A("s_cmp_lg_u32 s37, 60"); A("s_cbranch_scc1 L_r2"); stamp(2); A("L_r2:")
    A("s_cmp_lt_u32 s37, 64"); A("s_cbranch_scc1 L_loop1")
    for sl in range(2):
        A("s_waitcnt vmcnt(4)")
        if sl==0: kl(SL[1],1); A("s_mov_b32 s36, s39")
        else: vl(SL[0],1); adv(0)
        qk(SL[sl],(0,))
        A("s_waitcnt vmcnt(4)")
        vl(SL[sl],0)
        qk(SL[sl],(1,)); scores(16*sl)
    xrow("v_max_f32",vm,t2)
    A("s_lshl_b32 s43, s3, 2"); A(f"v_mov_b32 v{t0}, s43")
    A(f"v_add_u32 v{vS}, s53, v{vG}")
    A("s_mov_b32 s37, 2")
    A("s_waitcnt lgkmcnt(0)")
    A("s_mov_b64 exec, 1")
    A(f"ds_write_b32 v{t0}, v{vm} offset:{L_M}")
    A("s_mov_b64 exec, -1")
    for sl in range(2): A(f"ds_read_b32 v{SCR[sl]}, v{vS} offset:{16*sl}")
    stamp(5)
    def vstep(sl):
        A("s_waitcnt lgkmcnt(0)")
        probs(SCR[sl])
        A(f"ds_read_b32 v{SCR[sl]}, v{vS} offset:{32+16*sl}")
        A("s_waitcnt vmcnt(4)")
        vl(SL[1-sl],1)
        A(f"s_add_u32 s36, s36, {STEP[sl]}")
        pv(SL[sl],0)
        A("s_waitcnt vmcnt(4)")
        vl(SL[sl],0)
        pv(SL[sl],1)
    A("L_loop2:")
    for sl in range(2): vstep(sl)
    A(f"v_add_u32 v{vS}, 32, v{vS}")
    A("s_add_u32 s37, s37, 2")
    if 'R' in dbg:
        A("s_cmp_lg_u32 s37, 6"); A("s_cbranch_scc1 L_r3"); stamp(3); A("L_r3:")
    A(f"s_cmp_lg_u32 s37, {S-KICK}"); A("s_cbranch_scc1 L_nokick")
    stamp(6)
    A(f"ds_write_b32 v{vT}, v{vT} offset:{L_KK}")
    A("L_nokick:")
    A(f"s_cmp_lt_u32 s37, {S}"); A("s_cbranch_scc1 L_loop2")
    uid=[0]
    def pstep(sl,n0,n1,loaded):
        uid[0]+=1
        if loaded: A("s_waitcnt vmcnt(7)")
        probs(SCR[sl])
        A(f"s_waitcnt vmcnt({n0})")
        vl(SL[1-sl],1)
        A("s_cmp_eq_u32 s34, 0"); A(f"s_cbranch_scc1 L_nobar{uid[0]}")
        A("s_barrier")
        A(f"L_nobar{uid[0]}:")
        A(f"ds_read_b32 v{vTK}, v{vT} offset:{L_TK+4*sl}")
        A("s_add_u32 s37, s37, 1")
        pv(SL[sl],0)
        A("s_waitcnt lgkmcnt(0)")
        A(f"v_readfirstlane_b32 s43, v{vTK}")
        A(f"s_cmp_gt_u32 s37, {TMAX}"); A("s_cselect_b32 s34, 0, s34")
        A(f"s_cmp_lt_u32 s43, {POOL}"); A("s_cselect_b32 s34, s34, 0")
        A(f"s_mov_b32 s{38+sl}, s34")
        A(f"s_min_u32 s43, s43, {POOL-1}")
        A("s_lshr_b32 s36, s43, 5"); A("s_lshl_b32 s36, s36, 2"); A("s_and_b32 s57, s43, 3"); A("s_add_u32 s36, s36, s57"); A("s_lshl_b32 s36, s36, 14")
        A("s_bfe_u32 s57, s43, 0x30002"); A("s_lshl_b32 s57, s57, 21"); A("s_add_u32 s36, s36, s57"); A("s_add_u32 s36, s36, s41")
        A("s_lshl_b32 s43, s43, 6"); A("s_add_u32 s43, s43, s52")
        A(f"buffer_load_dword v{SCR[sl]}, v{vG}, s[48:51], s43 offen sc1")
        A(f"s_waitcnt vmcnt({n1})")
        vl(SL[sl],0)
        pv(SL[sl],1)
    A("s_mov_b32 s37, 0")
    A("s_waitcnt lgkmcnt(0)")
    pstep(0,4,5,False); pstep(1,5,6,False)
    A(f"ds_read_b32 v{t1}, v{vT} offset:{L_MH}"); A("s_waitcnt lgkmcnt(0)")
    A(f"v_sub_f32 v{t2}, v{vm}, v{t1}"); A(f"v_mul_f32 v{t2}, s40, v{t2}"); A(f"v_exp_f32 v{t2}, v{t2}")
    A(f"v_mov_b32 v{vm}, v{t1}")
    for r in range(8): A(f"v_mul_f32 v{AC0+r}, v{AC0+r}, v{t2}")
    A("s_mov_b32 s46, 0xff00ff00"); A("s_mov_b32 s47, 0xff00ff00")
    A("s_lshl_b32 s43, s3, 10"); A(f"v_lshl_add_u32 v{vS}, v0, 4, s43")
    A("L_loop3:")
    for sl in range(2):
        A(f"s_cmp_eq_u32 s{38+sl}, 0"); A("s_cbranch_scc1 L_sdone")
        pstep(sl,5,6,True)
    A("s_branch L_loop3")
    A("L_sdone:")
    stamp(4)
    for r in range(8): dpp("v_add_f32",AC0+r,AC0+r,AC0+r,"row_ror:8")
    for r in range(4): A(f"v_cndmask_b32 v{AC0+r}, v{AC0+r}, v{AC1+r}, s[46:47]")
    A(f"ds_write_b128 v{vS}, v[{AC0}:{AC0+3}] offset:{L_O}")
    A("s_waitcnt lgkmcnt(0)")
    A("s_barrier")
    write_stamps()
    A("s_endpgm")

    X=10; XL=24; M=38; AA=42; AB=50; T=58; NEG=70; P=74; BB=78; DD=94; XC=110; IL=111; W1=112; WA=112; WB=176; BB2=240; TK=2
    vL16=3
    A("L_helper:")
    A("s_setprio 3")
    A("s_lshr_b32 s62, s2, 5"); A("s_lshl_b32 s62, s62, 3"); A("s_and_b32 s42, s2, 7"); A("s_add_u32 s62, s62, s42"); A("s_lshl_b32 s62, s62, 2")
    A("s_bfe_u32 s43, s2, 0x20003"); A("s_add_u32 s62, s62, s43")
    A("v_lshrrev_b32 v4, 1, v0"); A("v_lshlrev_b32 v1, 1, v4")
    A("v_and_b32 v5, 1, v0"); A("v_lshlrev_b32 v2, 13, v4"); A("v_lshl_add_u32 v2, v5, 4, v2")
    A(f"v_lshlrev_b32 v{vL16}, 4, v0")
    A("v_lshrrev_b32 v7, 4, v0"); A("v_lshl_add_u32 v4, v5, 2, v7"); A("v_lshlrev_b32 v4, 3, v4")
    for u in range(14): A(f"v_mov_b32 v{X+u}, 0")
    for r in range(4): A(f"v_mov_b32 v{NEG+r}, -1")
    A("s_lshr_b32 s89, s61, 3"); A("s_lshl_b32 s43, s60, 1"); A("s_add_u32 s90, s43, s89")
    A("s_and_b32 s43, s60, 3"); A("s_lshl_b32 s43, s43, 1"); A("s_add_u32 s43, s43, 1"); A("s_xor_b32 s43, s43, s42")
    A("s_cmp_ge_u32 s90, 28"); A("s_cselect_b32 s43, 1, s43")
    A("s_cmp_eq_u32 s43, 0"); A("s_cselect_b32 s41, 2, 0"); A("s_cselect_b32 s57, s90, 0")
    A("s_mul_i32 s94, s60, 14"); A("s_add_u32 s94, s94, s61"); A("s_sub_u32 s94, s94, s89")
    A("s_cmp_eq_u32 s42, 7"); A("s_cselect_b32 s94, 224, s94")
    A("s_lshl_b32 s95, s94, 8"); A(f"s_add_u32 s95, s95, {PFB}")
    A("s_lshl_b32 s56, s90, 13"); A(f"s_add_u32 s56, s56, {INB2}"); A("s_add_u32 s92, s56, 4096")
    A("s_lshl_b32 s43, s60, 3"); A("s_lshr_b32 s93, s61, 1"); A("s_add_u32 s93, s93, s43")
    A("s_lshl_b32 s58, s93, 11"); A(f"s_add_u32 s58, s58, {INB1}")
    A("s_lshl_b32 s54, s60, 8"); A(f"s_add_u32 s54, s54, {TICK}")
    A("s_lshl_b32 s42, s2, 7"); A(f"s_add_u32 s42, s42, {HDR}")
    A("v_cmp_eq_u32 vcc, 2, v0"); A(f"v_lshl_add_u32 v{T+7}, v0, 2, s42"); A(f"v_mov_b32 v{T+5}, s54")
    A(f"v_cndmask_b32 v{T+7}, v{T+7}, v{T+5}, vcc"); A(f"v_cndmask_b32 v{T+6}, -1, 0, vcc")
    A("s_waitcnt lgkmcnt(0)")
    srd(28,4,900); srd(32,10,448*8192); srd(36,26,hex(WSN))
    A("s_lshl_b32 s63, s62, 6")
    A(f"buffer_load_dword v5, v4, s[36:39], s63 offen offset:{QBUF+4} sc1")
    A("s_lshl_b32 s59, s60, 10")
    A(f"buffer_load_dwordx4 v[{P}:{P+3}], v{vL16}, s[36:39], s59 offen offset:{QBUF} sc1")
    A("s_bitcmp1_b32 s61, 0"); A("s_cbranch_scc1 L_cl1")
    for k in range(2): A(f"buffer_store_dwordx4 v[{NEG}:{NEG+3}], v{vL16}, s[36:39], s58 offen offset:{1024*k} sc1")
    A("L_cl1:")
    A("s_cmp_lg_u32 s41, 2"); A("s_cbranch_scc1 L_cl2")
    INS=['s56','s92']
    for k in range(8): A(f"buffer_store_dwordx4 v[{NEG}:{NEG+3}], v{vL16}, s[36:39], {INS[k>>2]} offen offset:{1024*(k&3)} sc1")
    A("L_cl2:")
    A("s_mov_b64 exec, 0xffff")
    A(f"buffer_store_dwordx4 v[{NEG}:{NEG+3}], v{vL16}, s[36:39], s95 offen sc1")
    A("s_cmp_eq_u32 s61, 0"); A("s_cselect_b32 exec_lo, 7, 3"); A("s_mov_b32 exec_hi, 0")
    A(f"buffer_store_dword v{T+6}, v{T+7}, s[36:39], 0 offen sc1")
    A("s_mov_b64 exec, -1")
    for u in range(14): A(f"buffer_load_short_d16_hi v{X+u}, v1, s[28:31], 0 offen offset:{64*u}")
    A("s_lshl_b32 s43, s62, 5")
    for u in range(14):
        A(f"buffer_load_dwordx4 v[{W1+4*u}:{W1+4*u+3}], v2, s[32:35], s43 offen {NT}")
        if u<13: A("s_add_u32 s43, s43, 0x40000")
    if f0==2: A("s_barrier")
    if f0:
        A("s_cmp_ge_u32 s94, 112"); A("s_cselect_b32 s88, s18, s16"); A("s_cselect_b32 s89, s19, s17"); A("s_cselect_b32 s43, 112, 0")
        A("s_cmp_eq_u32 s94, 224"); A(f"s_cselect_b32 s90, 0, {448*3584}"); A("s_mov_b32 s91, 0x00020000")
        A("s_sub_u32 s43, s94, s43"); A("s_and_b32 s52, s43, 3"); A("s_lshr_b32 s43, s43, 2"); A("s_lshl_b32 s43, s43, 7")
        A(f"s_mul_i32 s52, s52, {112*3584}"); A("s_add_u32 s43, s43, s52")
        A(f"v_lshrrev_b32 v{T+1}, 3, v0"); A(f"v_mul_u32_u24 v6, 3584, v{T+1}"); A(f"v_and_b32 v{T}, 7, v0"); A(f"v_lshl_add_u32 v6, v{T}, 4, v6")
        for u in range(14):
            A(f"buffer_load_dwordx4 v[{176+4*u}:{176+4*u+3}], v6, s[88:91], s43 offen {NT}")
            if u<13: A(f"s_add_u32 s43, s43, {8*3584}")
    if f0!=2: A("s_barrier")
    masks(M,T)
    def allred(r,t):
        dpp("v_add_f32",r,r,r,"quad_perm:[2,3,0,1]"); dpp("v_add_f32",r,r,r,"row_ror:4"); dpp("v_add_f32",r,r,r,"row_ror:8")
        xrow("v_add_f32",r,t)
    A(f"s_waitcnt vmcnt({28 if f0 else 14})")
    A(f"v_add_f32 v{T}, v{X}, v{X+1}"); A(f"v_add_f32 v{T+1}, v{X+2}, v{X+3}")
    for u in range(4,14,2):
        A(f"v_add_f32 v{T}, v{T}, v{X+u}"); A(f"v_add_f32 v{T+1}, v{T+1}, v{X+u+1}")
    A(f"v_add_f32 v{T}, v{T}, v{T+1}")
    allred(T,T+1)
    A(f"v_mul_f32 v{T}, {f2h(1/448)}, v{T}")
    for u in range(14): A(f"v_sub_f32 v{XL+u}, v{X+u}, v{T}")
    A(f"v_mul_f32 v{T+1}, v{XL}, v{XL}"); A(f"v_mul_f32 v{T+2}, v{XL+1}, v{XL+1}")
    for u in range(2,14,2):
        A(f"v_fmac_f32 v{T+1}, v{XL+u}, v{XL+u}"); A(f"v_fmac_f32 v{T+2}, v{XL+u+1}, v{XL+u+1}")
    A(f"v_add_f32 v{T+1}, v{T+1}, v{T+2}")
    allred(T+1,T+2)
    A(f"v_mul_f32 v{T+1}, {f2h(1/448)}, v{T+1}")
    A(f"v_cvt_pk_bf16_f32 v{T+2}, v{T}, v{T+1}")
    A(f"v_lshlrev_b32 v{T}, 16, v{T+2}"); A(f"v_and_b32 v{T+1}, 0xffff0000, v{T+2}")
    A(f"v_add_f32 v{T+1}, {f2h(1e-5)}, v{T+1}")
    A(f"v_cvt_pk_bf16_f32 v{T+1}, v{T+1}, v{T+1}"); A(f"v_and_b32 v{T+1}, 0xffff0000, v{T+1}")
    A(f"v_sqrt_f32 v{T+1}, v{T+1}")
    A(f"v_cvt_pk_bf16_f32 v{T+1}, v{T+1}, v{T+1}"); A(f"v_and_b32 v{T+1}, 0xffff0000, v{T+1}")
    A(f"v_rcp_f32 v{T+1}, v{T+1}")
    for u in range(0,14,2):
        a,b=X+u,X+u+1
        A(f"v_sub_f32 v{a}, v{a}, v{T}"); A(f"v_sub_f32 v{b}, v{b}, v{T}")
        A(f"v_cvt_pk_bf16_f32 v{T+2}, v{a}, v{b}")
        A(f"v_lshlrev_b32 v{a}, 16, v{T+2}"); A(f"v_and_b32 v{b}, 0xffff0000, v{T+2}")
        A(f"v_mul_f32 v{a}, v{a}, v{T+1}"); A(f"v_mul_f32 v{b}, v{b}, v{T+1}")
        A(f"v_cvt_pk_bf16_f32 v{T+2}, v{a}, v{b}")
        A(f"v_lshlrev_b32 v{a}, 16, v{T+2}"); A(f"v_and_b32 v{b}, 0xffff0000, v{T+2}")
        A(f"v_and_b32 v{XL+u}, 0xffff, v{T+2}"); A(f"v_lshrrev_b32 v{XL+u+1}, 16, v{T+2}")
    def dots(a,w,u,first):
        for t in range(4):
            A(f"v_dot2_f32_bf16 v{a+2*t}, v{w+t}, v{XL+u}, "+("0" if first else f"v{a+2*t}"))
            A(f"v_dot2_f32_bf16 v{a+2*t+1}, v{w+t}, v{X+u}, "+("0" if first else f"v{a+2*t+1}"))
    def colsum(a,ctls):
        merge4(a,a+2,a+4,a+6); merge4(a+1,a+3,a+5,a+7)
        for ctl in ctls:
            dpp("v_add_f32",a,a,a,ctl); dpp("v_add_f32",a+1,a+1,a+1,ctl)
    def qslice(counted):
        for u in range(14):
            if counted: A(f"s_waitcnt vmcnt({13-u+(14 if f0 else 0)})")
            dots(AA,W1+4*u,u,u==0)
        colsum(AA,("quad_perm:[2,3,0,1]","row_ror:4","row_ror:8"))
        A(f"v_cvt_pk_bf16_f32 v{T}, v{AA}, v{AA+1}")
    qslice(True)
    A(f"v_add_u32 v{T+1}, 1, v5")
    A(f"v_add_u32 v8, 1, v{P+1}"); A(f"v_add_u32 v9, 1, v{P+3}")
    setexec(0x0003000300030003)
    A(f"buffer_store_dwordx2 v[{T}:{T+1}], v4, s[36:39], s63 offen offset:{QBUF} sc1")
    A("s_mov_b64 exec, -1")
    if 'T' not in dbg: stamp(1)
    srd(44,24,256)
    A("s_mov_b32 s53, 0"); A("s_mov_b32 s87, 0")
    A("L_qpoll:")
    A(f"buffer_load_dwordx4 v[{P}:{P+3}], v{vL16}, s[36:39], s59 offen offset:{QBUF} sc1")
    A("s_add_u32 s53, s53, 1"); A(f"s_cmp_gt_u32 s53, {QTRY}"); A("s_cbranch_scc1 L_qself")
    A("s_waitcnt vmcnt(0)")
    A(f"v_cmp_ne_u32 vcc, v8, v{P+1}"); A(f"v_cmp_ne_u32 s[48:49], v9, v{P+3}")
    A("s_or_b64 vcc, vcc, s[48:49]")
    A("s_cbranch_vccnz L_qpoll")
    A(f"v_mov_b32 v{P+1}, v{P+2}"); A(f"v_lshlrev_b32 v{T}, 3, v0")
    A(f"ds_write_b64 v{T}, v[{P}:{P+1}]")
    A("s_cmp_lg_u32 s61, 0"); A("s_cbranch_scc1 L_qok")
    A("s_lshl_b32 s43, s60, 2"); A(f"v_mov_b32 v{T}, s43"); A(f"v_mov_b32 v{T+1}, 1")
    A("s_mov_b64 exec, 1")
    A(f"buffer_store_dword v{T+1}, v{T}, s[44:47], 0 offen sc1")
    A("s_mov_b64 exec, -1")
    A("L_qok:")
    A(f"v_lshlrev_b32 v{T}, 2, v0"); A("s_mov_b64 exec, 31"); A(f"ds_write_b32 v{T}, v{NEG} offset:{L_M}"); A("s_mov_b64 exec, -1")
    A("s_waitcnt lgkmcnt(0)")
    if 'T' not in dbg: stamp(2)
    A("s_barrier")
    A("v_and_b32 v5, 15, v0"); A("v_lshlrev_b32 v5, 4, v5")
    A("s_mov_b32 s50, 0xff00ff00"); A("s_mov_b32 s51, 0xff00ff00")
    def rowloads(W,voff,soffs):
        for cb in range(4):
            if cb==3: setexec(0x00ff00ff00ff00ff)
            for u in range(4):
                sg,im=soffs[u]
                A(f"buffer_load_dwordx4 v[{W+16*u+4*cb}:{W+16*u+4*cb+3}], v{voff}, s[32:35], {sg} offen offset:{im+256*cb} {NT}")
        A("s_mov_b64 exec, -1")
    def gemvB(srcs):
        def sel(k):
            W,r,ctl=srcs[k]; bb=(BB,BB2)[k>>2]+4*(k&3)
            for t in range(4): dpp("v_and_b32",bb+t,r,M+t,ctl)
        sel(0)
        for k in range(len(srcs)):
            if k+1<len(srcs): sel(k+1)
            W=srcs[k][0]; bb=(BB,BB2)[k>>2]+4*(k&3)
            for cb in range(4):
                A(f"v_mfma_f32_16x16x32_bf16 v[{DD+4*cb}:{DD+4*cb+3}], v[{W+4*cb}:{W+4*cb+3}], v[{bb}:{bb+3}], v[{DD+4*cb}:{DD+4*cb+3}]")
    WG_=176
    def ffn_loads():
        if f0:
            A("s_cmp_eq_u32 s94, 224"); A("s_cbranch_scc1 L_f1")
            A("s_and_b32 s52, s94, 3"); A("s_mul_i32 s52, s52, 448"); A(f"v_lshrrev_b32 v{T+1}, 3, v0"); A(f"v_lshl_add_u32 v{T+1}, v{T+1}, 2, s52")
            for u in range(14): A(f"ds_read_b32 v{X+u}, v{T+1} offset:{L_XN+32*u}")
            A("L_f1:")
        else: ffn_a()
        ffn_b()
    def ffn_a():
        A("s_cmp_eq_u32 s94, 224"); A("s_cbranch_scc1 L_f1")
        A("s_cmp_ge_u32 s94, 112"); A("s_cselect_b32 s32, s18, s16"); A("s_cselect_b32 s33, s19, s17"); A("s_cselect_b32 s43, 112, 0")
        A(f"s_mov_b32 s34, {448*3584}"); A("s_mov_b32 s35, 0x00020000")
        A("s_sub_u32 s43, s94, s43"); A("s_and_b32 s52, s43, 3"); A("s_lshr_b32 s43, s43, 2"); A("s_lshl_b32 s43, s43, 7")
        A(f"s_mul_i32 s88, s52, {112*3584}"); A("s_add_u32 s43, s43, s88"); A("s_mul_i32 s52, s52, 448")
        A(f"v_lshrrev_b32 v{T+1}, 3, v0"); A(f"v_mul_u32_u24 v6, 3584, v{T+1}"); A(f"v_and_b32 v{T}, 7, v0"); A(f"v_lshl_add_u32 v6, v{T}, 4, v6")
        A(f"v_lshl_add_u32 v{T+1}, v{T+1}, 2, s52")
        for u in range(14):
            A(f"buffer_load_dwordx4 v[{WG_+4*u}:{WG_+4*u+3}], v6, s[32:35], s43 offen {NT}")
            if u<13: A(f"s_add_u32 s43, s43, {8*3584}")
        for u in range(14): A(f"ds_read_b32 v{X+u}, v{T+1} offset:{L_XN+32*u}")
        A("L_f1:")
    def ffn_b():
        A("s_bitcmp1_b32 s61, 0"); A("s_cbranch_scc1 L_f2")
        srd(32,20,1792*896)
        A("v_mul_u32_u24 v8, 896, v7"); A("v_add_u32 v8, v8, v5")
        A(f"s_mul_i32 s43, s93, {14*896}")
        for r in range(16): A(f"v_mov_b32 v{WA+48+r}, 0")
        for u in range(4):
            for cb in range(4):
                m=(0x00ff00ff00ff00ff if cb==3 else (1<<64)-1)&(0xffffffff if u==3 else (1<<64)-1)
                if cb==3 or (u==3 and cb==0) or (cb==0 and u>0): setexec(m)
                A(f"buffer_load_dwordx4 v[{WA+16*u+4*cb}:{WA+16*u+4*cb+3}], v8, s[32:35], s43 offen offset:{256*cb} {NT}")
            if u<3: A(f"s_add_u32 s43, s43, {4*896}")
        A("s_mov_b64 exec, -1")
        A("L_f2:")
    def ffn_step1():
        A("s_cmp_eq_u32 s94, 224"); A("s_cbranch_scc1 L_f3")
        A("s_waitcnt vmcnt(0) lgkmcnt(0)")
        for u in range(14): A(f"v_lshrrev_b32 v{XL+u}, 16, v{X+u}")
        for u in range(14): dots(AA,WG_+4*u,u,u==0)
        colsum(AA,("row_ror:8",))
        A(f"v_min_u32 v{AA}, -2, v{AA}"); A(f"v_min_u32 v{AA+1}, -2, v{AA+1}")
        A(f"v_and_b32 v{T}, 7, v0"); A(f"v_lshlrev_b32 v{T}, 5, v{T}"); A(f"v_lshl_add_u32 v{T}, v7, 3, v{T}")
        setexec(0x00ff00ff00ff00ff)
        A(f"buffer_store_dwordx2 v[{AA}:{AA+1}], v{T}, s[36:39], s95 offen sc1")
        A("s_mov_b64 exec, -1")
        A("L_f3:")
    def ffn_step2():
        A("s_bitcmp1_b32 s61, 0"); A("s_cbranch_scc1 L_f4")
        A(f"v_and_b32 v{T}, 12, v0"); A(f"v_add_u32 v{T}, v{T}, v7")
        A(f"v_cmp_gt_u32 s[88:89], 14, v{T}")
        A("s_mul_i32 s43, s93, 14"); A(f"v_add_u32 v{T}, s43, v{T}"); A(f"v_min_u32 v{T}, 0x6ff, v{T}")
        A(f"v_lshrrev_b32 v{T+1}, 6, v{T}"); A(f"v_and_b32 v{T}, 63, v{T}"); A(f"v_lshlrev_b32 v{T}, 2, v{T}"); A(f"v_lshl_add_u32 v{T}, v{T+1}, 10, v{T}")
        A(f"v_and_b32 v{T+1}, 3, v0"); A(f"v_lshl_add_u32 v{T}, v{T+1}, 8, v{T}")
        A(f"s_mov_b32 s43, {PFB}"); A(f"s_mov_b32 s52, {PFB+112*256}"); A("s_mov_b32 s53, 0")
        A("L_fpoll:")
        A(f"buffer_load_dword v{AA}, v{T}, s[36:39], s43 offen sc1"); A(f"buffer_load_dword v{AB}, v{T}, s[36:39], s52 offen sc1")
        A("s_waitcnt vmcnt(0)")
        A(f"v_max_u32 v{T+1}, v{AA}, v{AB}"); A(f"v_cmp_eq_u32 vcc, -1, v{T+1}")
        A("s_cbranch_vccz L_fok")
        A("s_sleep 32")
        A("s_add_u32 s53, s53, 1"); A(f"s_cmp_ge_u32 s53, {SPIN}"); A("s_cbranch_scc1 L_end")
        A("s_branch L_fpoll")
        A("L_fok:")
        for ctl in ("quad_perm:[1,0,3,2]","quad_perm:[2,3,0,1]"):
            dpp("v_add_f32",AA,AA,AA,ctl); dpp("v_add_f32",AB,AB,AB,ctl)
        A(f"v_cvt_pk_bf16_f32 v{T}, v{AA}, v{AB}")
        A(f"v_lshlrev_b32 v{AA}, 16, v{T}"); A(f"v_and_b32 v{AB}, 0xffff0000, v{T}")
        k0=math.sqrt(2/math.pi); k1=0.044715
        A(f"s_mov_b32 s48, {f2h(k1)}")
        g=AA; t=T+2
        A(f"v_mul_f32 v{t}, v{g}, v{g}"); A(f"v_mul_f32 v{t}, v{t}, v{g}")
        A(f"v_fma_f32 v{t}, s48, v{t}, v{g}")
        A(f"v_mul_f32 v{t}, {f2h(-2*k0*math.log2(math.e))}, v{t}")
        A(f"v_exp_f32 v{t}, v{t}"); A(f"v_add_f32 v{t}, 1.0, v{t}"); A(f"v_rcp_f32 v{t}, v{t}")
        A(f"v_mul_f32 v{g}, v{g}, v{t}")
        A(f"v_cvt_pk_bf16_f32 v{T}, v{AA}, v{AA}"); A(f"v_and_b32 v{AA}, 0xffff0000, v{T}")
        A(f"v_mul_f32 v{AA}, v{AA}, v{AB}")
        A(f"v_cvt_pk_bf16_f32 v{AA}, v{AA}, v{AA}")
        A(f"v_cndmask_b32 v{AA}, 0, v{AA}, s[88:89]")
        gemvB([(WA+16*k,AA,f"row_newbcast:{4*k}") for k in range(4)])
        A("L_f4:")
    def certs():
        A(f"v_lshlrev_b32 v{T+1}, 2, v0"); A("s_mov_b32 s53, 0")
        A("L_apoll:")
        A(f"buffer_load_dword v{T}, v{T+1}, s[44:47], 0 offen sc1"); A("s_waitcnt vmcnt(0)")
        A(f"v_cmp_eq_u32 vcc, 0, v{T}")
        A("s_and_b32 s43, vcc_lo, 0xffff"); A("s_cbranch_scc1 L_help")
    for r in range(16): A(f"v_mov_b32 v{DD+r}, 0")
    A(f"v_lshrrev_b32 v{T}, 1, v0"); A(f"v_lshlrev_b32 v{T}, 2, v{T}")
    for u in range(14): A(f"ds_write_b32 v{T}, v{X+u} offset:{L_XN+128*u}")
    A("s_waitcnt lgkmcnt(0)")
    if 'T' not in dbg: stamp(3)
    def ldswait(name,off,n):
        A("s_mov_b32 s53, 0"); A(f"v_and_b32 v{T+1}, {n-1}, v0"); A(f"v_lshlrev_b32 v{T+1}, 2, v{T+1}")
        A(f"{name}:")
        A(f"ds_read_b32 v{T}, v{T+1} offset:{off}"); A("s_waitcnt lgkmcnt(0)")
        A(f"v_cmp_eq_u32 vcc, -1, v{T}"); A(f"s_cbranch_vccz {name}_ok")
        A("s_sleep 4"); A("s_add_u32 s53, s53, 1"); A(f"s_cmp_ge_u32 s53, {SPIN*8}"); A("s_cbranch_scc1 L_end"); A(f"s_branch {name}")
        A(f"{name}_ok:")
    ldswait("L_wmid",L_M,4)
    if 'F' not in dbg: ffn_loads()
    A(f"v_and_b32 v{T}, 3, v0"); A(f"v_lshlrev_b32 v{T}, 10, v{T}"); A(f"v_lshrrev_b32 v{T+1}, 2, v0"); A(f"v_lshl_add_u32 v{T}, v{T+1}, 4, v{T}")
    A(f"v_mov_b32 v1, 0")
    A(f"ds_read_b128 v[{AA}:{AA+3}], v{T} offset:{L_SC+16*S}")
    A(f"ds_read_b128 v[{AB}:{AB+3}], v1 offset:{L_M}")
    for k in range(4): A(f"ds_read_b128 v[{BB+4*k}:{BB+4*k+3}], v{vL16} offset:{L_SC+1024*k}")
    A(f"v_and_b32 v{T}, 7, v0"); A(f"v_lshlrev_b32 v{T}, 4, v{T}"); A(f"v_lshrrev_b32 v{T+1}, 3, v0"); A(f"v_lshl_add_u32 v{T}, v{T+1}, 11, v{T}")
    A(f"s_mul_i32 s43, s60, {POOL*64}"); A("s_and_b32 s52, s61, 7"); A("s_lshl_b32 s52, s52, 8"); A("s_add_u32 s43, s43, s52")
    A("s_lshr_b32 s52, s61, 3"); A("s_lshl_b32 s52, s52, 7"); A("s_add_u32 s43, s43, s52"); A(f"s_add_u32 s43, s43, {SCB}")
    A("s_waitcnt lgkmcnt(0)")
    setexec((1<<(4*NP))-1)
    A(f"buffer_store_dwordx4 v[{AA}:{AA+3}], v{T}, s[36:39], s43 offen sc1")
    A("s_mov_b64 exec, -1")
    A(f"v_max3_f32 v{AB}, v{AB}, v{AB+1}, v{AB+2}"); A(f"v_max_f32 v{AB}, v{AB}, v{AB+3}")
    A(f"v_mov_b32 v{AB+1}, 0"); A(f"v_mov_b32 v{AB+2}, 0")
    for k in range(16):
        A(f"v_lshlrev_b32 v{T}, 16, v{BB+k}"); A(f"v_and_b32 v{T+1}, 0xffff0000, v{BB+k}")
        A(f"v_sub_f32 v{T}, v{T}, v{AB}"); A(f"v_sub_f32 v{T+1}, v{T+1}, v{AB}")
        A(f"v_mul_f32 v{T}, s40, v{T}"); A(f"v_mul_f32 v{T+1}, s40, v{T+1}")
        A(f"v_exp_f32 v{T}, v{T}"); A(f"v_exp_f32 v{T+1}, v{T+1}")
        A(f"v_add_f32 v{AB+1}, v{AB+1}, v{T}"); A(f"v_add_f32 v{AB+2}, v{AB+2}, v{T+1}")
    A(f"v_add_f32 v{AB+1}, v{AB+1}, v{AB+2}")
    dpp("v_add_f32",AB+1,AB+1,AB+1,"quad_perm:[1,0,3,2]"); allred(AB+1,T)
    A(f"v_min_u32 v{AB}, -2, v{AB}"); A(f"v_min_u32 v{AB+1}, -2, v{AB+1}")
    A("s_mov_b64 exec, 1")
    A("s_waitcnt vmcnt(0)")
    A(f"buffer_store_dwordx2 v[{AB}:{AB+1}], v1, s[36:39], s42 offen sc1")
    A("s_mov_b64 exec, -1")
    if 'F' not in dbg: ffn_step1()
    certs()
    if 'F' not in dbg: ffn_step2()
    def anyneg(rs,t):
        A(f"v_max3_u32 v{t}, v{rs[0]}, v{rs[1]}, v{rs[2]}")
        rs=rs[3:]
        while len(rs)>=2:
            A(f"v_max3_u32 v{t}, v{t}, v{rs[0]}, v{rs[1]}"); rs=rs[2:]
        if rs: A(f"v_max_u32 v{t}, v{t}, v{rs[0]}")
        A(f"v_cmp_eq_u32 vcc, -1, v{t}")
    A("s_lshr_b32 s43, s57, 1"); A("s_lshl_b32 s43, s43, 6"); A("s_and_b32 s52, s57, 1"); A("s_lshl_b32 s52, s52, 3"); A("s_add_u32 s43, s43, s52")
    A("v_and_b32 v4, 3, v0"); A("v_lshlrev_b32 v9, 1, v4"); A("v_lshl_add_u32 v9, v7, 4, v9"); A("v_add_u32 v9, s43, v9")
    A(f"v_mov_b32 v{XC}, 0")
    A(f"buffer_load_short_d16_hi v{XC}, v9, s[28:31], 0 offen")
    srd(28,22,900)
    srd(32,12,4096*896)
    A("v_mul_u32_u24 v8, 7168, v7"); A("v_add_u32 v8, v8, v5")
    A("s_lshl_b32 s43, s60, 8"); A("s_bfe_u32 s52, s61, 0x10001"); A("s_lshl_b32 s52, s52, 7"); A("s_add_u32 s43, s43, s52")
    A("s_lshr_b32 s52, s61, 2"); A("s_lshl_b32 s52, s52, 5"); A("s_add_u32 s43, s43, s52")
    A("s_mul_i32 s49, s43, 896"); A(f"s_add_u32 s63, s49, {4*896}")
    def wol(lbl):
        A("s_bitcmp1_b32 s61, 0"); A(f"s_cbranch_scc1 {lbl}")
        rowloads(WA,8,[("s49",896*u) for u in range(4)]); rowloads(WB,8,[("s63",896*u) for u in range(4)])
        A(f"{lbl}:")
    A("v_lshlrev_b32 v4, 4, v4"); A("v_bfe_u32 v6, v0, 2, 1"); A("v_lshl_add_u32 v4, v6, 13, v4")
    A("v_lshl_add_u32 v4, v7, 14, v4"); A("v_bfe_u32 v6, v0, 3, 1"); A("v_lshl_add_u32 v4, v6, 16, v4")
    A("v_and_b32 v6, 7, v0"); A("v_lshlrev_b32 v6, 4, v6"); A("v_lshrrev_b32 v5, 3, v0"); A("v_lshl_add_u32 v6, v5, 11, v6")
    A("s_lshl_b32 s43, s60, 14"); A(f"s_add_u32 s43, s43, {INB1}"); A("s_lshl_b32 s52, s61, 7"); A("s_add_u32 s59, s43, s52")
    A(f"s_lshl_b32 s43, s93, 6"); A(f"s_add_u32 s55, s43, {INB2}"); A(f"s_add_u32 s48, s55, {16*8192}")
    stamp(4)
    ldswait("L_wkick",L_KK,1)
    A(f"v_and_b32 v{T+2}, 15, v0"); A(f"v_lshlrev_b32 v{T+2}, 7, v{T+2}")
    A("s_lshl_b32 s42, s60, 11"); A(f"s_add_u32 s42, s42, {HDR}")
    A("s_mov_b32 s53, 0")
    A("L_cpoll:")
    A(f"buffer_load_dwordx2 v[{AA}:{AA+1}], v{T+2}, s[36:39], s42 offen sc1"); A("s_waitcnt vmcnt(0)")
    A(f"v_max_u32 v{T}, v{AA}, v{AA+1}"); A(f"v_cmp_eq_u32 vcc, -1, v{T}")
    A("s_cbranch_vccz L_cok")
    A("s_sleep 16")
    A("s_add_u32 s53, s53, 1"); A(f"s_cmp_ge_u32 s53, {SPIN}"); A("s_cbranch_scc1 L_end")
    A("s_branch L_cpoll")
    A("L_cok:")
    A("s_mov_b64 exec, 1"); A(f"v_mov_b32 v{TK}, 1"); A(f"buffer_atomic_add v{TK}, v1, s[36:39], s54 offen sc0"); A("s_mov_b64 exec, -1")
    dpp("v_max_f32",T,AA,AA,"row_ror:8")
    for ctl in ("row_ror:4","row_ror:2","row_ror:1"): dpp("v_max_f32",T,T,T,ctl)
    A(f"v_sub_f32 v{AA}, v{AA}, v{T}"); A(f"v_mul_f32 v{AA}, s40, v{AA}"); A(f"v_exp_f32 v{AA}, v{AA}")
    A(f"v_mul_f32 v{IL}, v{AA}, v{AA+1}")
    for ctl in ("row_ror:8","row_ror:4","row_ror:2","row_ror:1"): dpp("v_add_f32",IL,IL,IL,ctl)
    A(f"v_rcp_f32 v{IL}, v{IL}")
    A("s_mov_b64 exec, 1")
    A(f"ds_write_b32 v1, v{T} offset:{L_MH}")
    A("s_mov_b32 s52, 0")
    A("L_tloop:")
    for q in range(2):
        A("s_waitcnt vmcnt(0)")
        A(f"ds_write_b32 v1, v{TK} offset:{L_TK+4*q}")
        A(f"v_readfirstlane_b32 s43, v{TK}")
        A("s_add_u32 s52, s52, 1"); A(f"s_cmp_gt_u32 s52, {TMAX}"); A(f"s_cselect_b32 s43, {POOL}, s43")
        A("s_waitcnt lgkmcnt(0)")
        A(f"s_cmp_ge_u32 s43, {POOL}"); A("s_cbranch_scc1 L_tdone")
        A(f"v_mov_b32 v{TK}, 1"); A(f"buffer_atomic_add v{TK}, v1, s[36:39], s54 offen sc0")
        A("s_barrier")
    A("s_branch L_tloop")
    A("L_tdone:")
    A("s_barrier")
    A("s_mov_b64 exec, -1")
    wol("L_wo")
    A("s_barrier")
    stamp(5)
    O=AA
    for w in range(4): A(f"ds_read_b128 v[{O+4*w}:{O+4*w+3}], v{vL16} offset:{L_O+1024*w}")
    A("s_waitcnt lgkmcnt(2)")
    for r in range(4): A(f"v_add_f32 v{O+r}, v{O+r}, v{O+4+r}")
    A("s_waitcnt lgkmcnt(0)")
    for r in range(4): A(f"v_add_f32 v{O+8+r}, v{O+8+r}, v{O+12+r}")
    for r in range(4): A(f"v_add_f32 v{O+r}, v{O+r}, v{O+8+r}")
    for r in range(4): A(f"v_mul_f32 v{O+r}, v{O+r}, v{IL}")
    for r in range(4): A(f"v_min_u32 v{O+r}, -2, v{O+r}")
    A(f"buffer_store_dwordx4 v[{O}:{O+3}], v6, s[36:39], s59 offen sc1")
    if 'T' in dbg: stamp(1)
    A("s_mov_b32 s53, 0")
    A("s_bitcmp1_b32 s61, 0"); A("s_cbranch_scc1 L_upper")
    def poll(name,base,issue,nops,check,fin):
        n=len(base)
        for k in range(n-1): issue(base[k])
        A(f"{name}:")
        A("s_add_u32 s53, s53, 1"); A(f"s_cmp_ge_u32 s53, {SPIN}"); A("s_cbranch_scc1 L_end")
        for k in range(n):
            issue(base[(k+n-1)%n])
            check(base[k],nops*(n-1))
            if k<n-1: A(f"s_cbranch_vccz {name}_{k}")
            else: A(f"s_cbranch_vccnz {name}")
        for k in reversed(range(n)):
            if k<n-1: A(f"{name}_{k}:")
            fin(base[k])
            if k>0: A(f"s_branch {name}_done")
        A(f"{name}_done:")
    O=AA
    def iss1(b):
        for k in range(2): A(f"buffer_load_dwordx4 v[{b+4*k}:{b+4*k+3}], v{vL16}, s[36:39], s58 offen offset:{1024*k} sc1")
    def chk1(b,y):
        A(f"s_waitcnt vmcnt({y})"); anyneg([b+k for k in range(8)],T)
    def fin1(b):
        for r in range(4): A(f"v_add_f32 v{O+r}, v{b+r}, v{b+4+r}")
    poll("L_poll1",[AB,X],iss1,2,chk1,fin1)
    stamp(6)
    merge4(O,O+1,O+2,O+3)
    dpp("v_add_f32",O,O,O,"row_ror:8")
    A(f"v_cvt_pk_bf16_f32 v{O}, v{O}, v{O}")
    gemvB([(WA+16*k,O,f"row_newbcast:{k}") for k in range(8)])
    for half in range(2):
        d=DD+8*half
        for r in range(4): A(f"v_cndmask_b32 v{d+r}, v{d+r}, v{d+4+r}, s[50:51]")
        for r in range(4): A(f"v_min_u32 v{d+r}, -2, v{d+r}")
        if half: A("s_mov_b32 exec_hi, 0x00ff00ff")
        A(f"buffer_store_dwordx4 v[{d}:{d+3}], v4, s[36:39], {'s48' if half else 's55'} offen sc1")
    if 'T' in dbg: stamp(2)
    A("s_branch L_hend")
    A("L_upper:")
    A("s_cmp_lg_u32 s41, 2"); A("s_cbranch_scc1 L_hend")
    O=AA
    def iss2(b):
        for k in range(8): A(f"buffer_load_dwordx4 v[{b+4*k}:{b+4*k+3}], v{vL16}, s[36:39], {INS[k>>2]} offen offset:{1024*(k&3)} sc1")
    def chk2(b,y):
        for q in range(2):
            A(f"s_waitcnt vmcnt({y+4-4*q})")
            anyneg(([T] if q else [])+[b+16*q+k for k in range(16)],T)
    def fin2(b):
        for r in range(16): A(f"v_add_f32 v{O+r}, v{b+r}, v{b+16+r}")
    poll("L_poll2",[W1,W1+32],iss2,8,chk2,fin2)
    if 'T' in dbg: stamp(3)
    for st in (8,4):
        for r in range(st): A(f"v_add_f32 v{O+r}, v{O+r}, v{O+st+r}")
    merge4(O,O+1,O+2,O+3)
    for ctl in ("row_ror:4","row_ror:8"): dpp("v_add_f32",O,O,O,ctl)
    A(f"v_add_f32 v{O}, v{XC}, v{O}")
    A(f"v_cvt_pk_bf16_f32 v{O}, v{O}, v{O}")
    setexec(0x000f000f000f000f)
    A(f"buffer_store_short v{O}, v9, s[28:31], 0 offen")
    if zthr:
        stamp(7); A("s_waitcnt lgkmcnt(0)")
        A(f"s_sub_u32 s43, s78, s64"); A(f"s_cmp_lt_u32 s43, {zthr}"); A("s_cbranch_scc1 L_hend")
        A("s_mov_b32 s53, 30"); A("L_z:"); A("s_sleep 127"); A("s_sub_u32 s53, s53, 1"); A("s_cmp_lg_u32 s53, 0"); A("s_cbranch_scc1 L_z")
    A("L_hend:")
    stamp(7)
    write_stamps()
    A("L_end:")
    A("s_endpgm")
    A("L_qself:")
    A("s_lshl_b32 s52, s60, 9"); A(f"v_lshrrev_b32 v{T+8}, 1, v4")
    A("s_mov_b32 s53, 0")
    A("L_qs:")
    A("s_mov_b32 s43, s52")
    for u in range(14):
        A(f"buffer_load_dwordx4 v[{W1+4*u}:{W1+4*u+3}], v2, s[32:35], s43 offen")
        if u<13: A("s_add_u32 s43, s43, 0x40000")
    A("s_waitcnt vmcnt(0)")
    qslice(False)
    setexec(0x0003000300030003)
    A(f"ds_write_b32 v{T+8}, v{T}")
    A("s_mov_b64 exec, -1")
    A(f"v_add_u32 v{T+8}, 32, v{T+8}")
    A("s_add_u32 s52, s52, 32"); A("s_add_u32 s53, s53, 1"); A("s_cmp_lt_u32 s53, 16"); A("s_cbranch_scc1 L_qs")
    A("s_cmp_lg_u32 s61, 0"); A("s_cbranch_scc1 L_qok")
    A("s_mov_b32 s87, 1"); A(f"v_mov_b32 v{T}, 64"); A(f"v_mov_b32 v{T+1}, 1")
    A("s_mov_b64 exec, 1")
    A(f"buffer_store_dword v{T+1}, v{T}, s[44:47], 0 offen sc1")
    A("s_mov_b64 exec, -1")
    A("s_branch L_qok")
    A("L_help:")
    A("s_add_u32 s53, s53, 1"); A(f"s_cmp_ge_u32 s53, {SPIN}"); A("s_cbranch_scc1 L_end")
    A(f"v_readlane_b32 s43, v{T}, 16")
    A("s_cmp_eq_u32 s43, 0"); A("s_cbranch_scc1 L_help2")
    A("s_bitcmp1_b32 s87, 1"); A("s_cbranch_scc1 L_help1")
    A("s_or_b32 s87, s87, 2")
    A("s_lshr_b32 s43, s62, 4"); A("s_lshl_b32 s43, s43, 2"); A(f"v_mov_b32 v{T+3}, s43"); A(f"v_mov_b32 v{T+4}, 1")
    A("s_mov_b64 exec, 1")
    A(f"buffer_atomic_add v{T+4}, v{T+3}, s[44:47], 0 offen offset:128")
    A("s_mov_b64 exec, -1")
    A("L_help1:")
    A("s_bitcmp1_b32 s87, 0"); A("s_cbranch_scc0 L_help2")
    A("s_add_u32 s52, s60, 32"); A(f"v_readlane_b32 s43, v{T}, s52")
    A("s_cmp_lt_u32 s43, 16"); A("s_cbranch_scc1 L_help2")
    A("s_lshl_b32 s43, s60, 2"); A(f"v_mov_b32 v{T+3}, s43"); A(f"v_mov_b32 v{T+4}, 1")
    A("s_mov_b64 exec, 1")
    A(f"buffer_store_dword v{T+4}, v{T+3}, s[44:47], 0 offen sc1")
    A("s_mov_b64 exec, -1")
    A("L_help2:")
    A("s_sleep 32")
    A("s_branch L_apoll")
    A(f""".section .rodata,"a"
.p2align 6
.amdhsa_kernel {NAME}_kernel
  .amdhsa_next_free_vgpr 256
  .amdhsa_next_free_sgpr 96
  .amdhsa_accum_offset 256
  .amdhsa_group_segment_fixed_size 0
  .amdhsa_kernarg_size 96
  .amdhsa_user_sgpr_count 2
  .amdhsa_user_sgpr_kernarg_segment_ptr 1
  .amdhsa_system_sgpr_workgroup_id_x 1
.end_amdhsa_kernel""")
    return "\n".join(pad(L))+"\n"

if __name__=='__main__':
    kw={}
    for t in sys.argv[2:]:
        k,v=t.split('=')
        try: v=int(v)
        except ValueError: v=v.replace('_',' ')
        kw[k]=v
    open(sys.argv[1],'w').write(gen(**kw))
```

```python
import struct, sys, math
from asmlib import pad
NAME='parallel_sum__mha_block_cached__geglu_ffn__decode'
def f2h(x): return '0x%08x'%struct.unpack('<I',struct.pack('<f',x))[0]
C_SC=f2h(math.log2(math.e)/16)
QBUF=0x0; INB1=0x10000; PFB=0x60000; INB2=0x80000; TICK=0xC0000; HDR=0xC8000; SCB=0xD0000; WSN=0x120000
L_TK=512; L_MH=520; L_M=656; L_KK=672; L_O=1024; L_SC=5120; L_XN=9728; LDSN=11520
SPIN=1<<17

HEADER='''; out = x + attention(LN(x)) @ wo + GEGLU-FFN(LN(x)): one decode token, 16 heads x 32768 cached keys x 256 dims.
'''

def gen(S=56, KICK=2, extras=10, NT='nt', stamps=0, dbg='', QTRY=32, zthr=0, f0=0, XF='', CF='sc1', WSO=0, VNT='nt', KNT='nt', TH2=0, F2=1, smap=0, rmap=0, fast=1):
    L=[]; A=L.append
    NP=64-S; POOL=NP*16; TMAX=1100
    assert S%2==0 and extras%2==0 and KICK%2==0 and 2+2*extras+4<64 and KICK<S<=62 and NP<=16
    assert SCB+16*POOL*64<=WSN
    def stamp(k):
        if stamps: A(f"s_memrealtime s[{64+2*k}:{65+2*k}]")
    def srd(b,p,n):
        A(f"s_mov_b32 s{b}, s{p}"); A(f"s_mov_b32 s{b+1}, s{p+1}"); A(f"s_mov_b32 s{b+2}, {n}"); A(f"s_mov_b32 s{b+3}, 0x00020000")
    def setexec(m):
        A(f"s_mov_b32 exec_lo, {hex(m&0xffffffff)}"); A(f"s_mov_b32 exec_hi, {hex(m>>32)}")
    def write_stamps():
        if stamps!=1: return
        A("s_waitcnt lgkmcnt(0)")
        A("s_mov_b32 s80, s26"); A("s_mov_b32 s81, s27"); A("s_mov_b32 s82, 0x40000000"); A("s_mov_b32 s83, 0x00020000")
        A("s_mul_i32 s84, s2, 5"); A("s_add_u32 s84, s84, s3"); A("s_lshl_b32 s84, s84, 6"); A("s_add_u32 s84, s84, 0x20000000")
        A("s_mov_b64 exec, 1"); A("v_mov_b32 v1, 0")
        for k in range(4):
            for i in range(4): A(f"v_mov_b32 v{4+i}, s{64+4*k+i}")
            A(f"buffer_store_dwordx4 v[4:7], v1, s[80:83], s84 offen offset:{16*k}")
            A("s_nop 1")
        A("s_waitcnt vmcnt(0)")
    def masks(b, tmp):
        A(f"v_and_b32 v{tmp}, 1, v0"); A(f"v_cmp_eq_u32 vcc, 1, v{tmp}")
        A(f"v_mov_b32 v{tmp}, 0xffff"); A(f"v_mov_b32 v{tmp+1}, 0xffff0000")
        A(f"v_cndmask_b32 v{tmp}, v{tmp}, v{tmp+1}, vcc")
        A(f"v_bfe_u32 v{tmp+1}, v0, 1, 2")
        for t in range(4):
            A(f"v_cmp_eq_u32 vcc, {t}, v{tmp+1}")
            A(f"v_cndmask_b32 v{b+t}, 0, v{tmp}, vcc")
    def dpp(op,d,a,b,ctl): A(f"{op}_dpp v{d}, v{a}, v{b} {ctl} row_mask:0xf bank_mask:0xf")
    def xrow(op,r,t):
        A(f"v_mov_b32 v{t}, v{r}"); A(f"v_permlane16_swap_b32 v{r}, v{t}"); A(f"{op} v{r}, v{r}, v{t}")
        A(f"v_mov_b32 v{t}, v{r}"); A(f"v_permlane32_swap_b32 v{r}, v{t}"); A(f"{op} v{r}, v{r}, v{t}")
    def merge4(a,b,c,d):
        A(f"v_permlane32_swap_b32 v{a}, v{c}"); A(f"v_permlane32_swap_b32 v{b}, v{d}")
        A(f"v_add_f32 v{a}, v{a}, v{c}"); A(f"v_add_f32 v{b}, v{b}, v{d}")
        A(f"v_permlane16_swap_b32 v{a}, v{b}"); A(f"v_add_f32 v{a}, v{a}, v{b}")

    for l in HEADER.strip().split('\n'): A(l)
    A(f"; @launch grid=(256,1,1) block=(320,1,1) lds={LDSN}")
    A('.amdgcn_target "amdgcn-amd-amdhsa--gfx950"')
    A(".text"); A(f".globl {NAME}_kernel"); A(".p2align 8"); A(f".type {NAME}_kernel,@function"); A(f"{NAME}_kernel:")
    if stamps:
        for k in range(1,8): A(f"s_mov_b64 s[{64+2*k}:{65+2*k}], 0")
    stamp(0)
    A("s_cmp_ge_u32 s2, 256"); A("s_cbranch_scc1 L_end")
    A("s_load_dwordx16 s[4:19], s[0:1], 0")
    A("s_load_dwordx8 s[20:27], s[0:1], 64")
    A("v_lshrrev_b32 v1, 6, v0"); A("v_and_b32 v0, 63, v0"); A("v_readfirstlane_b32 s3, v1")
    A("s_lshr_b32 s60, s2, 4"); A("s_and_b32 s61, s2, 15")
    A(f"s_mov_b32 s40, {C_SC}")
    if WSO: A("s_waitcnt lgkmcnt(0)"); A(f"s_add_u32 s26, s26, {hex(WSO<<20)}"); A("s_addc_u32 s27, s27, 0")
    A("s_cmp_eq_u32 s3, 4"); A("s_cbranch_scc1 L_helper")

    vK,vV,vT=1,2,3; M=4; SEL=8; vm=9; vTK=10; vS=11; D=12; AC0=16; AC1=20; B0=24; B1=28; Q=32
    s0,s1,t0,t1,t2,vG=48,49,50,51,52,53; SCR=[54,55]
    SL=[56,72]; EXT=[88+16*i for i in range(extras)]
    A("v_and_b32 v1, 7, v0"); A("v_lshlrev_b32 v1, 9, v1")
    A("v_bfe_u32 v2, v0, 3, 1"); A("v_lshl_add_u32 v1, v2, 6, v1")
    A("v_lshrrev_b32 v3, 4, v0"); A("v_lshl_add_u32 v1, v3, 4, v1")
    A("s_lshl_b32 s41, s60, 24"); A("s_lshl_b32 s43, s3, 12"); A("s_add_u32 s41, s41, s43")
    roff=lambda n: ((n&1)<<14)+((n>>1)<<16)
    A("s_and_b32 s39, s61, 7"); A("s_lshl_b32 s39, s39, 21"); A("s_add_u32 s39, s39, s41")
    A("s_lshr_b32 s43, s61, 3"); A("s_lshl_b32 s43, s43, 15"); A("s_add_u32 s39, s39, s43")
    A("s_mov_b32 s36, s39")
    A("s_waitcnt lgkmcnt(0)")
    srd(28,6,'0x10000000')
    def kl(b,h):
        for t in (2*h,2*h+1): A(f"buffer_load_dwordx4 v[{b+4*t}:{b+4*t+3}], v{vK}, s[28:31], s36 offen offset:{128*t} {KNT.replace('none','')}")
    def vl(b,h):
        for u in (2*h,2*h+1): A(f"buffer_load_dwordx4 v[{b+4*u}:{b+4*u+3}], v{vV}, s[32:35], s36 offen offset:{(u>>1)*1024+(u&1)*256} {VNT.replace('none','')}")
    def adv(n): A(f"s_add_u32 s36, s36, {roff(n+1)-roff(n)}")
    nl=0
    for n,b in enumerate(SL+EXT):
        for h in range(2):
            if n==1 and h==1: continue
            if 'k' in dbg and nl==0: A("s_barrier"); A("s_sleep 40")
            if nl>4: A("s_waitcnt vmcnt(4)")
            kl(b,h); nl+=2
        adv(n)
        if n==0:
            srd(32,8,'0x10000000'); srd(48,26,hex(WSN))
            A(f"s_add_u32 s41, s41, {roff(S)}")
            A(f"s_mul_i32 s52, s60, {POOL*64}"); A("s_lshl_b32 s43, s3, 4"); A("s_add_u32 s52, s52, s43"); A(f"s_add_u32 s52, s52, {SCB}")
            A("v_bfe_u32 v2, v0, 4, 1"); A("v_lshlrev_b32 v2, 11, v2")
            A("v_lshrrev_b32 v3, 5, v0"); A("v_lshl_add_u32 v2, v3, 9, v2")
            A("v_and_b32 v3, 15, v0"); A("v_lshl_add_u32 v2, v3, 4, v2")
            masks(M,t0)
            A(f"v_and_b32 v{t0}, 8, v0"); A(f"v_cmp_eq_u32 vcc, 8, v{t0}"); A(f"v_cndmask_b32 v{SEL}, 0, 1.0, vcc")
            A(f"v_mov_b32 v{vm}, 0xff7fffff")
            for r in range(8): A(f"v_mov_b32 v{AC0+r}, 0")
            A(f"v_and_b32 v{vT}, 1, v0"); A(f"v_lshlrev_b32 v{vT}, 6, v{vT}")
            A(f"v_lshrrev_b32 v{t0}, 4, v0"); A(f"v_lshl_add_u32 v{vT}, v{t0}, 4, v{vT}")
            A(f"v_lshlrev_b32 v{vG}, 2, v{t0}")
            A("s_lshl_b32 s43, s3, 10"); A(f"s_add_u32 s53, s43, {L_SC}"); A(f"v_add_u32 v{vS}, s53, v{vG}")
            A("s_mov_b32 s44, 0x00010001"); A("s_mov_b32 s45, 0x00010001")
            if 'k' not in dbg: A("s_barrier")
    A(f"s_add_u32 s36, s39, {roff(1)}")
    stamp(1)
    A("s_barrier")
    for t in range(4): A(f"ds_read_b128 v[{Q+4*t}:{Q+4*t+3}], v{vT} offset:{128*t}")
    A(f"v_mov_b32 v{vT}, 0")
    A("s_waitcnt lgkmcnt(0)")
    stamp(2)
    def qk(b,hs=(0,1)):
        if 'N' in dbg: return
        for t in [t for h in hs for t in (2*h,2*h+1)]:
            A(f"v_mfma_f32_16x16x32_bf16 v[{D}:{D+3}], v[{b+4*t}:{b+4*t+3}], v[{Q+4*t}:{Q+4*t+3}], "+("0" if t==0 else f"v[{D}:{D+3}]"))
    def scores(off):
        if 'N' in dbg: return
        A(f"v_permlane32_swap_b32 v{D}, v{D+1}"); A(f"v_permlane32_swap_b32 v{D+2}, v{D+3}")
        A(f"v_mov_b32_dpp v{t0}, v{D+1} quad_perm:[1,1,3,3] row_mask:0xf bank_mask:0xf")
        A(f"v_mov_b32_dpp v{t1}, v{D+3} quad_perm:[1,1,3,3] row_mask:0xf bank_mask:0xf")
        dpp("v_add_f32",s0,D,t0,"quad_perm:[0,0,2,2]"); dpp("v_add_f32",s1,D+2,t1,"quad_perm:[0,0,2,2]")
        A(f"v_cvt_pk_bf16_f32 v{t0}, v{s0}, v{s1}")
        A("s_mov_b64 exec, s[44:45]")
        A(f"ds_write_b32 v{vS}, v{t0} offset:{off}")
        A("s_mov_b64 exec, -1")
        A(f"v_lshlrev_b32 v{s0}, 16, v{t0}"); A(f"v_and_b32 v{s1}, 0xffff0000, v{t0}")
        A(f"v_max3_f32 v{vm}, v{s0}, v{s1}, v{vm}")
    def probs(src):
        if 'N' in dbg or 'P' in dbg: return
        A(f"v_lshlrev_b32 v{s0}, 16, v{src}"); A(f"v_and_b32 v{s1}, 0xffff0000, v{src}")
        A(f"v_sub_f32 v{s0}, v{s0}, v{vm}"); A(f"v_sub_f32 v{s1}, v{s1}, v{vm}")
        A(f"v_mul_f32 v{s0}, s40, v{s0}"); A(f"v_mul_f32 v{s1}, s40, v{s1}")
        A(f"v_exp_f32 v{s0}, v{s0}"); A(f"v_exp_f32 v{s1}, v{s1}")
        A(f"v_cvt_pk_bf16_f32 v{t0}, v{s0}, v{s1}")
        A(f"v_lshlrev_b32 v{t1}, 16, v{t0}"); A(f"v_and_b32 v{t2}, 0xffff0000, v{t0}")
        A(f"v_fma_f32 v{s0}, -v{t1}, v{SEL}, v{s0}"); A(f"v_fma_f32 v{s1}, -v{t2}, v{SEL}, v{s1}")
        A(f"v_cvt_pk_bf16_f32 v{t0}, v{s0}, v{s0}"); A(f"v_cvt_pk_bf16_f32 v{t1}, v{s1}, v{s1}")
        for t in range(4): A(f"v_and_b32 v{B0+t}, v{t0}, v{M+t}")
        for t in range(4): A(f"v_and_b32 v{B1+t}, v{t1}, v{M+t}")
    def pv(b,h):
        if 'N' in dbg: return
        for u in (2*h,2*h+1):
            ac=AC1 if (u&1) else AC0; bb=B1 if (u>>1) else B0
            A(f"v_mfma_f32_16x16x32_bf16 v[{ac}:{ac+3}], v[{b+4*u}:{b+4*u+3}], v[{bb}:{bb+3}], v[{ac}:{ac+3}]")
    def kstep(sl,step,off):
        A("s_waitcnt vmcnt(4)")
        kl(SL[1-sl],1)
        A(f"s_add_u32 s36, s36, {step}")
        qk(SL[sl],(0,))
        A("s_waitcnt vmcnt(4)")
        kl(SL[sl],0)
        qk(SL[sl],(1,)); scores(off)
    STEP=(roff(2)-roff(1),roff(1))
    k=0; it=0
    while k<extras:
        for sl in range(2):
            first=(it==0 and sl==0)
            kstep(sl,roff(2+extras)-roff(1) if first else STEP[sl],16*(sl if it==0 else extras+2*it+sl))
            if not first and k<extras:
                qk(EXT[k]); scores(16*(2+k)); k+=1
        it+=1
    A(f"v_add_u32 v{vS}, {16*(extras+2*it)}, v{vS}")
    A(f"s_mov_b32 s37, {2+extras+2*it}")
    if 'R' not in dbg: stamp(3)
    A("L_loop1:")
    for sl in range(2): kstep(sl,STEP[sl],16*sl)
    A(f"v_add_u32 v{vS}, 32, v{vS}")
    A("s_add_u32 s37, s37, 2")
    if 'R' in dbg:
        A("s_cmp_lg_u32 s37, 28"); A("s_cbranch_scc1 L_r1"); stamp(1); A("L_r1:")
        A("s_cmp_lg_u32 s37, 60"); A("s_cbranch_scc1 L_r2"); stamp(2); A("L_r2:")
    A("s_cmp_lt_u32 s37, 64"); A("s_cbranch_scc1 L_loop1")
    for sl in range(2):
        A("s_waitcnt vmcnt(4)")
        if sl==0: kl(SL[1],1); A("s_mov_b32 s36, s39")
        else: vl(SL[0],1); adv(0)
        qk(SL[sl],(0,))
        A("s_waitcnt vmcnt(4)")
        vl(SL[sl],0)
        qk(SL[sl],(1,)); scores(16*sl)
    xrow("v_max_f32",vm,t2)
    A("s_lshl_b32 s43, s3, 2"); A(f"v_mov_b32 v{t0}, s43")
    A(f"v_add_u32 v{vS}, s53, v{vG}")
    A("s_mov_b32 s37, 2")
    A("s_waitcnt lgkmcnt(0)")
    A("s_mov_b64 exec, 1")
    A(f"ds_write_b32 v{t0}, v{vm} offset:{L_M}")
    A("s_mov_b64 exec, -1")
    for sl in range(2): A(f"ds_read_b32 v{SCR[sl]}, v{vS} offset:{16*sl}")
    stamp(5)
    def vstep(sl):
        A("s_waitcnt lgkmcnt(0)")
        probs(SCR[sl])
        A(f"ds_read_b32 v{SCR[sl]}, v{vS} offset:{32+16*sl}")
        A("s_waitcnt vmcnt(4)")
        vl(SL[1-sl],1)
        A(f"s_add_u32 s36, s36, {STEP[sl]}")
        pv(SL[sl],0)
        A("s_waitcnt vmcnt(4)")
        vl(SL[sl],0)
        pv(SL[sl],1)
    A("L_loop2:")
    for sl in range(2): vstep(sl)
    A(f"v_add_u32 v{vS}, 32, v{vS}")
    A("s_add_u32 s37, s37, 2")
    if 'R' in dbg:
        A("s_cmp_lg_u32 s37, 6"); A("s_cbranch_scc1 L_r3"); stamp(3); A("L_r3:")
    A(f"s_cmp_lg_u32 s37, {S-KICK}"); A("s_cbranch_scc1 L_nokick")
    stamp(6)
    A(f"ds_write_b32 v{vT}, v{vT} offset:{L_KK}")
    A("L_nokick:")
    A(f"s_cmp_lt_u32 s37, {S}"); A("s_cbranch_scc1 L_loop2")
    uid=[0]
    def pstep(sl,n0,n1,loaded):
        uid[0]+=1
        if loaded: A("s_waitcnt vmcnt(7)")
        probs(SCR[sl])
        A(f"s_waitcnt vmcnt({n0})")
        vl(SL[1-sl],1)
        A("s_cmp_eq_u32 s34, 0"); A(f"s_cbranch_scc1 L_nobar{uid[0]}")
        A("s_barrier")
        A(f"L_nobar{uid[0]}:")
        A(f"ds_read_b32 v{vTK}, v{vT} offset:{L_TK+4*sl}")
        A("s_add_u32 s37, s37, 1")
        pv(SL[sl],0)
        A("s_waitcnt lgkmcnt(0)")
        A(f"v_readfirstlane_b32 s43, v{vTK}")
        A(f"s_cmp_gt_u32 s37, {TMAX}"); A("s_cselect_b32 s34, 0, s34")
        A(f"s_cmp_lt_u32 s43, {POOL}"); A("s_cselect_b32 s34, s34, 0")
        A(f"s_mov_b32 s{38+sl}, s34")
        A(f"s_min_u32 s43, s43, {POOL-1}")
        A("s_lshr_b32 s36, s43, 5"); A("s_lshl_b32 s36, s36, 2"); A("s_and_b32 s57, s43, 3"); A("s_add_u32 s36, s36, s57"); A("s_lshl_b32 s36, s36, 14")
        A("s_bfe_u32 s57, s43, 0x30002"); A("s_lshl_b32 s57, s57, 21"); A("s_add_u32 s36, s36, s57"); A("s_add_u32 s36, s36, s41")
        A("s_lshl_b32 s43, s43, 6"); A("s_add_u32 s43, s43, s52")
        A(f"buffer_load_dword v{SCR[sl]}, v{vG}, s[48:51], s43 offen sc1")
        A(f"s_waitcnt vmcnt({n1})")
        vl(SL[sl],0)
        pv(SL[sl],1)
    A("s_mov_b32 s37, 0")
    A("s_waitcnt lgkmcnt(0)")
    pstep(0,4,5,False); pstep(1,5,6,False)
    A(f"ds_read_b32 v{t1}, v{vT} offset:{L_MH}"); A("s_waitcnt lgkmcnt(0)")
    A(f"v_sub_f32 v{t2}, v{vm}, v{t1}"); A(f"v_mul_f32 v{t2}, s40, v{t2}"); A(f"v_exp_f32 v{t2}, v{t2}")
    A(f"v_mov_b32 v{vm}, v{t1}")
    for r in range(8): A(f"v_mul_f32 v{AC0+r}, v{AC0+r}, v{t2}")
    A("s_mov_b32 s46, 0xff00ff00"); A("s_mov_b32 s47, 0xff00ff00")
    A("s_lshl_b32 s43, s3, 10"); A(f"v_lshl_add_u32 v{vS}, v0, 4, s43")
    A("L_loop3:")
    for sl in range(2):
        A(f"s_cmp_eq_u32 s{38+sl}, 0"); A("s_cbranch_scc1 L_sdone")
        pstep(sl,5,6,True)
    A("s_branch L_loop3")
    A("L_sdone:")
    stamp(4)
    for r in range(8): dpp("v_add_f32",AC0+r,AC0+r,AC0+r,"row_ror:8")
    for r in range(4): A(f"v_cndmask_b32 v{AC0+r}, v{AC0+r}, v{AC1+r}, s[46:47]")
    A(f"ds_write_b128 v{vS}, v[{AC0}:{AC0+3}] offset:{L_O}")
    A("s_waitcnt lgkmcnt(0)")
    A("s_barrier")
    write_stamps()
    A("s_endpgm")

    X=10; XL=24; M=38; AA=42; AB=50; T=58; NEG=70; P=74; BB=78; DD=94; XC=110; IL=111; W1=112; WA=112; WB=176; BB2=240; TK=2
    vL16=3
    A("L_helper:")
    if 'I' in dbg: stamp(3)
    A("s_setprio 3")
    A("s_lshr_b32 s62, s2, 5"); A("s_lshl_b32 s62, s62, 3"); A("s_and_b32 s42, s2, 7"); A("s_add_u32 s62, s62, s42"); A("s_lshl_b32 s62, s62, 2")
    if smap==1: A("s_xor_b32 s62, s62, 4")
    if smap==2: A("s_lshl_b32 s62, s42, 3"); A("s_lshr_b32 s43, s2, 5"); A("s_add_u32 s62, s62, s43"); A("s_lshl_b32 s62, s62, 2")
    A("s_bfe_u32 s43, s2, 0x20003"); A("s_add_u32 s62, s62, s43")
    RS,US=((1,32),(14,1),(2,64))[rmap if rmap<2 else 0]
    A("v_lshrrev_b32 v4, 1, v0")
    if RS>1: A(f"v_mul_u32_u24 v4, {RS}, v4")
    A("v_lshlrev_b32 v1, 1, v4")
    A("v_and_b32 v5, 1, v0"); A("v_lshlrev_b32 v2, 13, v4"); A("v_lshl_add_u32 v2, v5, 4, v2")
    A(f"v_lshlrev_b32 v{vL16}, 4, v0")
    A("v_lshrrev_b32 v7, 4, v0"); A("v_lshl_add_u32 v4, v5, 2, v7"); A("v_lshlrev_b32 v4, 3, v4")
    for u in range(14): A(f"v_mov_b32 v{X+u}, 0")
    for r in range(4): A(f"v_mov_b32 v{NEG+r}, -1")
    A("s_lshr_b32 s89, s61, 3"); A("s_lshl_b32 s43, s60, 1"); A("s_add_u32 s90, s43, s89")
    A("s_and_b32 s43, s60, 3"); A("s_lshl_b32 s43, s43, 1"); A("s_add_u32 s43, s43, 1"); A("s_xor_b32 s43, s43, s42")
    A("s_cmp_ge_u32 s90, 28"); A("s_cselect_b32 s43, 1, s43")
    A("s_cmp_eq_u32 s43, 0"); A("s_cselect_b32 s41, 2, 0"); A("s_cselect_b32 s57, s90, 0")
    A("s_mul_i32 s94, s60, 14"); A("s_add_u32 s94, s94, s61"); A("s_sub_u32 s94, s94, s89")
    A("s_cmp_eq_u32 s42, 7"); A("s_cselect_b32 s94, 224, s94")
    A("s_lshl_b32 s95, s94, 8"); A(f"s_add_u32 s95, s95, {PFB}")
    A("s_lshl_b32 s56, s90, 13"); A(f"s_add_u32 s56, s56, {INB2}"); A("s_add_u32 s92, s56, 4096")
    A("s_lshl_b32 s43, s60, 3"); A("s_lshr_b32 s93, s61, 1"); A("s_add_u32 s93, s93, s43")
    A("s_lshl_b32 s58, s93, 11"); A(f"s_add_u32 s58, s58, {INB1}")
    A("s_lshl_b32 s54, s60, 8"); A(f"s_add_u32 s54, s54, {TICK}")
    A("s_lshl_b32 s42, s2, 7"); A(f"s_add_u32 s42, s42, {HDR}")
    A("v_cmp_eq_u32 vcc, 2, v0"); A(f"v_lshl_add_u32 v{T+7}, v0, 2, s42"); A(f"v_mov_b32 v{T+5}, s54")
    A(f"v_cndmask_b32 v{T+7}, v{T+7}, v{T+5}, vcc"); A(f"v_cndmask_b32 v{T+6}, -1, 0, vcc")
    A("s_waitcnt lgkmcnt(0)")
    srd(28,4,900); srd(32,10,448*8192); srd(36,26,hex(WSN))
    if 'I' in dbg: stamp(4)
    A("s_lshl_b32 s63, s62, 6")
    A(f"buffer_load_dword v5, v4, s[36:39], s63 offen offset:{QBUF+4} sc1")
    A("s_lshl_b32 s59, s60, 10")
    A(f"buffer_load_dwordx4 v[{P}:{P+3}], v{vL16}, s[36:39], s59 offen offset:{QBUF} sc1")
    if 'c' in dbg: A("s_mov_b32 s38, 0")
    A("s_bitcmp1_b32 s61, 0"); A("s_cbranch_scc1 L_cl1")
    for k in range(2): A(f"buffer_store_dwordx4 v[{NEG}:{NEG+3}], v{vL16}, s[36:39], s58 offen offset:{1024*k} {CF}")
    A("L_cl1:")
    A("s_cmp_lg_u32 s41, 2"); A("s_cbranch_scc1 L_cl2")
    INS=['s56','s92']
    for k in range(8): A(f"buffer_store_dwordx4 v[{NEG}:{NEG+3}], v{vL16}, s[36:39], {INS[k>>2]} offen offset:{1024*(k&3)} {CF}")
    A("L_cl2:")
    A("s_mov_b64 exec, 0xffff")
    A(f"buffer_store_dwordx4 v[{NEG}:{NEG+3}], v{vL16}, s[36:39], s95 offen sc1")
    A("s_cmp_eq_u32 s61, 0"); A("s_cselect_b32 exec_lo, 7, 3"); A("s_mov_b32 exec_hi, 0")
    A(f"buffer_store_dword v{T+6}, v{T+7}, s[36:39], 0 offen sc1")
    A("s_mov_b64 exec, -1")
    if 'c' in dbg: A(f"s_mov_b32 s38, {hex(WSN)}")
    if 'x' in dbg: A("s_mov_b32 s30, 0")
    for u in range(14): A(f"buffer_load_short_d16_hi v{X+u}, v1, s[28:31], 0 offen offset:{2*US*u} {XF}")
    A("s_lshl_b32 s43, s62, 5")
    for u in range(14):
        A(f"buffer_load_dwordx4 v[{W1+4*u}:{W1+4*u+3}], v2, s[32:35], s43 offen {'' if 'w' in dbg else NT}")
        if u<13: A(f"s_add_u32 s43, s43, {8192*US}")
    if f0==2: A("s_barrier")
    if f0:
        A("s_cmp_ge_u32 s94, 112"); A("s_cselect_b32 s88, s18, s16"); A("s_cselect_b32 s89, s19, s17"); A("s_cselect_b32 s43, 112, 0")
        A("s_cmp_eq_u32 s94, 224"); A(f"s_cselect_b32 s90, 0, {448*3584}"); A("s_mov_b32 s91, 0x00020000")
        A("s_sub_u32 s43, s94, s43"); A("s_and_b32 s52, s43, 3"); A("s_lshr_b32 s43, s43, 2"); A("s_lshl_b32 s43, s43, 7")
        A(f"s_mul_i32 s52, s52, {112*3584}"); A("s_add_u32 s43, s43, s52")
        A(f"v_lshrrev_b32 v{T+1}, 3, v0"); A(f"v_mul_u32_u24 v6, 3584, v{T+1}"); A(f"v_and_b32 v{T}, 7, v0"); A(f"v_lshl_add_u32 v6, v{T}, 4, v6")
        for u in range(14):
            A(f"buffer_load_dwordx4 v[{176+4*u}:{176+4*u+3}], v6, s[88:91], s43 offen {NT}")
            if u<13: A(f"s_add_u32 s43, s43, {8*3584}")
    if 'I' in dbg: stamp(5)
    if f0!=2: A("s_barrier")
    if 'I' in dbg: A("s_waitcnt vmcnt(14)"); stamp(6)
    masks(M,T)
    def allred(r,t):
        dpp("v_add_f32",r,r,r,"quad_perm:[2,3,0,1]"); dpp("v_add_f32",r,r,r,"row_ror:4"); dpp("v_add_f32",r,r,r,"row_ror:8")
        xrow("v_add_f32",r,t)
    A(f"s_waitcnt vmcnt({28 if f0 else 14})")
    A(f"v_add_f32 v{T}, v{X}, v{X+1}"); A(f"v_add_f32 v{T+1}, v{X+2}, v{X+3}")
    for u in range(4,14,2):
        A(f"v_add_f32 v{T}, v{T}, v{X+u}"); A(f"v_add_f32 v{T+1}, v{T+1}, v{X+u+1}")
    A(f"v_add_f32 v{T}, v{T}, v{T+1}")
    allred(T,T+1)
    A(f"v_mul_f32 v{T}, {f2h(1/448)}, v{T}")
    for u in range(14): A(f"v_sub_f32 v{XL+u}, v{X+u}, v{T}")
    A(f"v_mul_f32 v{T+1}, v{XL}, v{XL}"); A(f"v_mul_f32 v{T+2}, v{XL+1}, v{XL+1}")
    for u in range(2,14,2):
        A(f"v_fmac_f32 v{T+1}, v{XL+u}, v{XL+u}"); A(f"v_fmac_f32 v{T+2}, v{XL+u+1}, v{XL+u+1}")
    A(f"v_add_f32 v{T+1}, v{T+1}, v{T+2}")
    allred(T+1,T+2)
    A(f"v_mul_f32 v{T+1}, {f2h(1/448)}, v{T+1}")
    A(f"v_cvt_pk_bf16_f32 v{T+2}, v{T}, v{T+1}")
    A(f"v_lshlrev_b32 v{T}, 16, v{T+2}"); A(f"v_and_b32 v{T+1}, 0xffff0000, v{T+2}")
    A(f"v_add_f32 v{T+1}, {f2h(1e-5)}, v{T+1}")
    A(f"v_cvt_pk_bf16_f32 v{T+1}, v{T+1}, v{T+1}"); A(f"v_and_b32 v{T+1}, 0xffff0000, v{T+1}")
    A(f"v_sqrt_f32 v{T+1}, v{T+1}")
    A(f"v_cvt_pk_bf16_f32 v{T+1}, v{T+1}, v{T+1}"); A(f"v_and_b32 v{T+1}, 0xffff0000, v{T+1}")
    A(f"v_rcp_f32 v{T+1}, v{T+1}")
    for u in range(0,14,2):
        a,b=X+u,X+u+1
        A(f"v_sub_f32 v{a}, v{a}, v{T}"); A(f"v_sub_f32 v{b}, v{b}, v{T}")
        A(f"v_cvt_pk_bf16_f32 v{T+2}, v{a}, v{b}")
        A(f"v_lshlrev_b32 v{a}, 16, v{T+2}"); A(f"v_and_b32 v{b}, 0xffff0000, v{T+2}")
        A(f"v_mul_f32 v{a}, v{a}, v{T+1}"); A(f"v_mul_f32 v{b}, v{b}, v{T+1}")
        A(f"v_cvt_pk_bf16_f32 v{T+2}, v{a}, v{b}")
        A(f"v_lshlrev_b32 v{a}, 16, v{T+2}"); A(f"v_and_b32 v{b}, 0xffff0000, v{T+2}")
        A(f"v_and_b32 v{XL+u}, 0xffff, v{T+2}"); A(f"v_lshrrev_b32 v{XL+u+1}, 16, v{T+2}")
    def dots(a,w,u,first):
        for t in range(4):
            A(f"v_dot2_f32_bf16 v{a+2*t}, v{w+t}, v{XL+u}, "+("0" if first else f"v{a+2*t}"))
            A(f"v_dot2_f32_bf16 v{a+2*t+1}, v{w+t}, v{X+u}, "+("0" if first else f"v{a+2*t+1}"))
    def colsum(a,ctls):
        merge4(a,a+2,a+4,a+6); merge4(a+1,a+3,a+5,a+7)
        for ctl in ctls:
            dpp("v_add_f32",a,a,a,ctl); dpp("v_add_f32",a+1,a+1,a+1,ctl)
    def qslice(counted):
        for u in range(14):
            if counted: A(f"s_waitcnt vmcnt({13-u+(14 if f0 else 0)})")
            dots(AA,W1+4*u,u,u==0)
        colsum(AA,("quad_perm:[2,3,0,1]","row_ror:4","row_ror:8"))
        A(f"v_cvt_pk_bf16_f32 v{T}, v{AA}, v{AA+1}")
    qslice(True)
    A(f"v_add_u32 v{T+1}, 1, v5")
    A(f"v_add_u32 v8, 1, v{P+1}"); A(f"v_add_u32 v9, 1, v{P+3}")
    setexec(0x0003000300030003)
    A(f"buffer_store_dwordx2 v[{T}:{T+1}], v4, s[36:39], s63 offen offset:{QBUF} sc1")
    A("s_mov_b64 exec, -1")
    if 'T' not in dbg: stamp(1)
    srd(44,24,256)
    A("s_mov_b32 s53, 0"); A("s_mov_b32 s87, 0")
    A("L_qpoll:")
    A(f"buffer_load_dwordx4 v[{P}:{P+3}], v{vL16}, s[36:39], s59 offen offset:{QBUF} sc1")
    A("s_add_u32 s53, s53, 1"); A(f"s_cmp_gt_u32 s53, {QTRY}"); A("s_cbranch_scc1 L_qself")
    A("s_waitcnt vmcnt(0)")
    A(f"v_cmp_ne_u32 vcc, v8, v{P+1}"); A(f"v_cmp_ne_u32 s[48:49], v9, v{P+3}")
    A("s_or_b64 vcc, vcc, s[48:49]")
    A("s_cbranch_vccnz L_qpoll")
    A(f"v_mov_b32 v{P+1}, v{P+2}"); A(f"v_lshlrev_b32 v{T}, 3, v0")
    A(f"ds_write_b64 v{T}, v[{P}:{P+1}]")
    A("s_cmp_lg_u32 s61, 0"); A("s_cbranch_scc1 L_qok")
    A("s_lshl_b32 s43, s60, 2"); A(f"v_mov_b32 v{T}, s43"); A(f"v_mov_b32 v{T+1}, 1")
    A("s_mov_b64 exec, 1")
    A(f"buffer_store_dword v{T+1}, v{T}, s[44:47], 0 offen sc1")
    A("s_mov_b64 exec, -1")
    A("L_qok:")
    A(f"v_lshlrev_b32 v{T}, 2, v0"); A("s_mov_b64 exec, 31"); A(f"ds_write_b32 v{T}, v{NEG} offset:{L_M}"); A("s_mov_b64 exec, -1")
    A("s_waitcnt lgkmcnt(0)")
    if 'T' not in dbg: stamp(2)
    A("s_barrier")
    A("v_and_b32 v5, 15, v0"); A("v_lshlrev_b32 v5, 4, v5")
    A("s_mov_b32 s50, 0xff00ff00"); A("s_mov_b32 s51, 0xff00ff00")
    def rowloads(W,voff,soffs):
        for cb in range(4):
            if cb==3: setexec(0x00ff00ff00ff00ff)
            for u in range(4):
                sg,im=soffs[u]
                A(f"buffer_load_dwordx4 v[{W+16*u+4*cb}:{W+16*u+4*cb+3}], v{voff}, s[32:35], {sg} offen offset:{im+256*cb} {NT}")
        A("s_mov_b64 exec, -1")
    def gemvB(srcs):
        def sel(k):
            W,r,ctl=srcs[k]; bb=(BB,BB2)[k>>2]+4*(k&3)
            for t in range(4): dpp("v_and_b32",bb+t,r,M+t,ctl)
        sel(0)
        for k in range(len(srcs)):
            if k+1<len(srcs): sel(k+1)
            W=srcs[k][0]; bb=(BB,BB2)[k>>2]+4*(k&3)
            for cb in range(4):
                A(f"v_mfma_f32_16x16x32_bf16 v[{DD+4*cb}:{DD+4*cb+3}], v[{W+4*cb}:{W+4*cb+3}], v[{bb}:{bb+3}], v[{DD+4*cb}:{DD+4*cb+3}]")
    WG_=176
    def ffn_loads():
        if f0:
            A("s_cmp_eq_u32 s94, 224"); A("s_cbranch_scc1 L_f1")
            A("s_and_b32 s52, s94, 3"); A("s_mul_i32 s52, s52, 448"); A(f"v_lshrrev_b32 v{T+1}, 3, v0"); A(f"v_lshl_add_u32 v{T+1}, v{T+1}, 2, s52")
            for u in range(14): A(f"ds_read_b32 v{X+u}, v{T+1} offset:{L_XN+32*u}")
            A("L_f1:")
        else: ffn_a()
        ffn_b()
    def ffn_a():
        A("s_cmp_eq_u32 s94, 224"); A("s_cbranch_scc1 L_f1")
        A("s_cmp_ge_u32 s94, 112"); A("s_cselect_b32 s32, s18, s16"); A("s_cselect_b32 s33, s19, s17"); A("s_cselect_b32 s43, 112, 0")
        A(f"s_mov_b32 s34, {448*3584}"); A("s_mov_b32 s35, 0x00020000")
        A("s_sub_u32 s43, s94, s43"); A("s_and_b32 s52, s43, 3"); A("s_lshr_b32 s43, s43, 2"); A("s_lshl_b32 s43, s43, 7")
        A(f"s_mul_i32 s88, s52, {112*3584}"); A("s_add_u32 s43, s43, s88"); A("s_mul_i32 s52, s52, 448")
        A(f"v_lshrrev_b32 v{T+1}, 3, v0"); A(f"v_mul_u32_u24 v6, 3584, v{T+1}"); A(f"v_and_b32 v{T}, 7, v0"); A(f"v_lshl_add_u32 v6, v{T}, 4, v6")
        A(f"v_lshl_add_u32 v{T+1}, v{T+1}, 2, s52")
        for u in range(14):
            A(f"buffer_load_dwordx4 v[{WG_+4*u}:{WG_+4*u+3}], v6, s[32:35], s43 offen {NT}")
            if u<13: A(f"s_add_u32 s43, s43, {8*3584}")
        for u in range(14): A(f"ds_read_b32 v{X+u}, v{T+1} offset:{L_XN+32*u}")
        A("L_f1:")
    def ffn_b():
        A("s_bitcmp1_b32 s61, 0"); A("s_cbranch_scc1 L_f2")
        srd(32,20,1792*896)
        A("v_mul_u32_u24 v8, 896, v7"); A("v_add_u32 v8, v8, v5")
        A(f"s_mul_i32 s43, s93, {14*896}")
        for r in range(16): A(f"v_mov_b32 v{WA+48+r}, 0")
        for u in range(4):
            for cb in range(4):
                m=(0x00ff00ff00ff00ff if cb==3 else (1<<64)-1)&(0xffffffff if u==3 else (1<<64)-1)
                if cb==3 or (u==3 and cb==0) or (cb==0 and u>0): setexec(m)
                A(f"buffer_load_dwordx4 v[{WA+16*u+4*cb}:{WA+16*u+4*cb+3}], v8, s[32:35], s43 offen offset:{256*cb} {NT}")
            if u<3: A(f"s_add_u32 s43, s43, {4*896}")
        A("s_mov_b64 exec, -1")
        A("L_f2:")
    def ffn_step1():
        A("s_cmp_eq_u32 s94, 224"); A("s_cbranch_scc1 L_f3")
        A("s_waitcnt vmcnt(0) lgkmcnt(0)")
        for u in range(14): A(f"v_lshrrev_b32 v{XL+u}, 16, v{X+u}")
        for u in range(14): dots(AA,WG_+4*u,u,u==0)
        colsum(AA,("row_ror:8",))
        A(f"v_min_u32 v{AA}, -2, v{AA}"); A(f"v_min_u32 v{AA+1}, -2, v{AA+1}")
        A(f"v_and_b32 v{T}, 7, v0"); A(f"v_lshlrev_b32 v{T}, 5, v{T}"); A(f"v_lshl_add_u32 v{T}, v7, 3, v{T}")
        setexec(0x00ff00ff00ff00ff)
        A(f"buffer_store_dwordx2 v[{AA}:{AA+1}], v{T}, s[36:39], s95 offen sc1")
        A("s_mov_b64 exec, -1")
        A("L_f3:")
    def ffn_step2():
        A("s_bitcmp1_b32 s61, 0"); A("s_cbranch_scc1 L_f4")
        A(f"v_and_b32 v{T}, 12, v0"); A(f"v_add_u32 v{T}, v{T}, v7")
        A(f"v_cmp_gt_u32 s[88:89], 14, v{T}")
        A("s_mul_i32 s43, s93, 14"); A(f"v_add_u32 v{T}, s43, v{T}"); A(f"v_min_u32 v{T}, 0x6ff, v{T}")
        A(f"v_lshrrev_b32 v{T+1}, 6, v{T}"); A(f"v_and_b32 v{T}, 63, v{T}"); A(f"v_lshlrev_b32 v{T}, 2, v{T}"); A(f"v_lshl_add_u32 v{T}, v{T+1}, 10, v{T}")
        A(f"v_and_b32 v{T+1}, 3, v0"); A(f"v_lshl_add_u32 v{T}, v{T+1}, 8, v{T}")
        A(f"s_mov_b32 s43, {PFB}"); A(f"s_mov_b32 s52, {PFB+112*256}"); A("s_mov_b32 s53, 0")
        A("L_fpoll:")
        A(f"buffer_load_dword v{AA}, v{T}, s[36:39], s43 offen sc1"); A(f"buffer_load_dword v{AB}, v{T}, s[36:39], s52 offen sc1")
        A("s_waitcnt vmcnt(0)")
        A(f"v_max_u32 v{T+1}, v{AA}, v{AB}"); A(f"v_cmp_eq_u32 vcc, -1, v{T+1}")
        A("s_cbranch_vccz L_fok")
        A("s_sleep 32")
        A("s_add_u32 s53, s53, 1"); A(f"s_cmp_ge_u32 s53, {SPIN}"); A("s_cbranch_scc1 L_end")
        A("s_branch L_fpoll")
        A("L_fok:")
        for ctl in ("quad_perm:[1,0,3,2]","quad_perm:[2,3,0,1]"):
            dpp("v_add_f32",AA,AA,AA,ctl); dpp("v_add_f32",AB,AB,AB,ctl)
        A(f"v_cvt_pk_bf16_f32 v{T}, v{AA}, v{AB}")
        A(f"v_lshlrev_b32 v{AA}, 16, v{T}"); A(f"v_and_b32 v{AB}, 0xffff0000, v{T}")
        k0=math.sqrt(2/math.pi); k1=0.044715
        A(f"s_mov_b32 s48, {f2h(k1)}")
        g=AA; t=T+2
        A(f"v_mul_f32 v{t}, v{g}, v{g}"); A(f"v_mul_f32 v{t}, v{t}, v{g}")
        A(f"v_fma_f32 v{t}, s48, v{t}, v{g}")
        A(f"v_mul_f32 v{t}, {f2h(-2*k0*math.log2(math.e))}, v{t}")
        A(f"v_exp_f32 v{t}, v{t}"); A(f"v_add_f32 v{t}, 1.0, v{t}"); A(f"v_rcp_f32 v{t}, v{t}")
        A(f"v_mul_f32 v{g}, v{g}, v{t}")
        A(f"v_cvt_pk_bf16_f32 v{T}, v{AA}, v{AA}"); A(f"v_and_b32 v{AA}, 0xffff0000, v{T}")
        A(f"v_mul_f32 v{AA}, v{AA}, v{AB}")
        A(f"v_cvt_pk_bf16_f32 v{AA}, v{AA}, v{AA}")
        A(f"v_cndmask_b32 v{AA}, 0, v{AA}, s[88:89]")
        gemvB([(WA+16*k,AA,f"row_newbcast:{4*k}") for k in range(4)])
        A("L_f4:")
    def certs():
        A(f"v_lshlrev_b32 v{T+1}, 2, v0"); A("s_mov_b32 s53, 0")
        A("L_apoll:")
        A(f"buffer_load_dword v{T}, v{T+1}, s[44:47], 0 offen sc1"); A("s_waitcnt vmcnt(0)")
        A(f"v_cmp_eq_u32 vcc, 0, v{T}")
        A("s_and_b32 s43, vcc_lo, 0xffff"); A("s_cbranch_scc1 L_help")
    for r in range(16): A(f"v_mov_b32 v{DD+r}, 0")
    A(f"v_lshlrev_b32 v{T}, 1, v1")
    for u in range(14): A(f"ds_write_b32 v{T}, v{X+u} offset:{L_XN+4*US*u}")
    A("s_waitcnt lgkmcnt(0)")
    if 'T' not in dbg and 'I' not in dbg: stamp(3)
    def ldswait(name,off,n):
        A("s_mov_b32 s53, 0"); A(f"v_and_b32 v{T+1}, {n-1}, v0"); A(f"v_lshlrev_b32 v{T+1}, 2, v{T+1}")
        A(f"{name}:")
        A(f"ds_read_b32 v{T}, v{T+1} offset:{off}"); A("s_waitcnt lgkmcnt(0)")
        A(f"v_cmp_eq_u32 vcc, -1, v{T}"); A(f"s_cbranch_vccz {name}_ok")
        A("s_sleep 4"); A("s_add_u32 s53, s53, 1"); A(f"s_cmp_ge_u32 s53, {SPIN*8}"); A("s_cbranch_scc1 L_end"); A(f"s_branch {name}")
        A(f"{name}_ok:")
    ldswait("L_wmid",L_M,4)
    if 'F' not in dbg: ffn_loads()
    A(f"v_and_b32 v{T}, 3, v0"); A(f"v_lshlrev_b32 v{T}, 10, v{T}"); A(f"v_lshrrev_b32 v{T+1}, 2, v0"); A(f"v_lshl_add_u32 v{T}, v{T+1}, 4, v{T}")
    A(f"v_mov_b32 v1, 0")
    A(f"ds_read_b128 v[{AA}:{AA+3}], v{T} offset:{L_SC+16*S}")
    A(f"ds_read_b128 v[{AB}:{AB+3}], v1 offset:{L_M}")
    for k in range(4): A(f"ds_read_b128 v[{BB+4*k}:{BB+4*k+3}], v{vL16} offset:{L_SC+1024*k}")
    A(f"v_and_b32 v{T}, 7, v0"); A(f"v_lshlrev_b32 v{T}, 4, v{T}"); A(f"v_lshrrev_b32 v{T+1}, 3, v0"); A(f"v_lshl_add_u32 v{T}, v{T+1}, 11, v{T}")
    A(f"s_mul_i32 s43, s60, {POOL*64}"); A("s_and_b32 s52, s61, 7"); A("s_lshl_b32 s52, s52, 8"); A("s_add_u32 s43, s43, s52")
    A("s_lshr_b32 s52, s61, 3"); A("s_lshl_b32 s52, s52, 7"); A("s_add_u32 s43, s43, s52"); A(f"s_add_u32 s43, s43, {SCB}")
    A("s_waitcnt lgkmcnt(0)")
    setexec((1<<(4*NP))-1)
    A(f"buffer_store_dwordx4 v[{AA}:{AA+3}], v{T}, s[36:39], s43 offen sc1")
    A("s_mov_b64 exec, -1")
    A(f"v_max3_f32 v{AB}, v{AB}, v{AB+1}, v{AB+2}"); A(f"v_max_f32 v{AB}, v{AB}, v{AB+3}")
    A(f"v_mov_b32 v{AB+1}, 0"); A(f"v_mov_b32 v{AB+2}, 0")
    for k in range(16):
        A(f"v_lshlrev_b32 v{T}, 16, v{BB+k}"); A(f"v_and_b32 v{T+1}, 0xffff0000, v{BB+k}")
        A(f"v_sub_f32 v{T}, v{T}, v{AB}"); A(f"v_sub_f32 v{T+1}, v{T+1}, v{AB}")
        A(f"v_mul_f32 v{T}, s40, v{T}"); A(f"v_mul_f32 v{T+1}, s40, v{T+1}")
        A(f"v_exp_f32 v{T}, v{T}"); A(f"v_exp_f32 v{T+1}, v{T+1}")
        A(f"v_add_f32 v{AB+1}, v{AB+1}, v{T}"); A(f"v_add_f32 v{AB+2}, v{AB+2}, v{T+1}")
    A(f"v_add_f32 v{AB+1}, v{AB+1}, v{AB+2}")
    dpp("v_add_f32",AB+1,AB+1,AB+1,"quad_perm:[1,0,3,2]"); allred(AB+1,T)
    A(f"v_min_u32 v{AB}, -2, v{AB}"); A(f"v_min_u32 v{AB+1}, -2, v{AB+1}")
    A("s_mov_b64 exec, 1")
    A("s_waitcnt vmcnt(0)")
    A(f"buffer_store_dwordx2 v[{AB}:{AB+1}], v1, s[36:39], s42 offen sc1")
    A("s_mov_b64 exec, -1")
    if 'F' not in dbg: ffn_step1()
    certs()
    if 'F' not in dbg: ffn_step2()
    def addv(d,a,b,n):
        if fast:
            for r in range(0,n,2): A(f"v_pk_add_f32 v[{d+r}:{d+r+1}], v[{a+r}:{a+r+1}], v[{b+r}:{b+r+1}]")
        else:
            for r in range(n): A(f"v_add_f32 v{d+r}, v{a+r}, v{b+r}")
    def anyneg(rs,t):
        A(f"v_max3_u32 v{t}, v{rs[0]}, v{rs[1]}, v{rs[2]}")
        rs=rs[3:]
        while len(rs)>=2:
            A(f"v_max3_u32 v{t}, v{t}, v{rs[0]}, v{rs[1]}"); rs=rs[2:]
        if rs: A(f"v_max_u32 v{t}, v{t}, v{rs[0]}")
        A(f"v_cmp_eq_u32 vcc, -1, v{t}")
    A("s_lshr_b32 s43, s57, 1"); A("s_lshl_b32 s43, s43, 6"); A("s_and_b32 s52, s57, 1"); A("s_lshl_b32 s52, s52, 3"); A("s_add_u32 s43, s43, s52")
    A("v_and_b32 v4, 3, v0"); A("v_lshlrev_b32 v9, 1, v4"); A("v_lshl_add_u32 v9, v7, 4, v9"); A("v_add_u32 v9, s43, v9")
    A(f"v_mov_b32 v{XC}, 0")
    A(f"buffer_load_short_d16_hi v{XC}, v9, s[28:31], 0 offen")
    srd(28,22,900)
    srd(32,12,4096*896)
    A("v_mul_u32_u24 v8, 7168, v7"); A("v_add_u32 v8, v8, v5")
    A("s_lshl_b32 s43, s60, 8"); A("s_bfe_u32 s52, s61, 0x10001"); A("s_lshl_b32 s52, s52, 7"); A("s_add_u32 s43, s43, s52")
    A("s_lshr_b32 s52, s61, 2"); A("s_lshl_b32 s52, s52, 5"); A("s_add_u32 s43, s43, s52")
    A("s_mul_i32 s49, s43, 896"); A(f"s_add_u32 s63, s49, {4*896}")
    def wol(lbl):
        A("s_bitcmp1_b32 s61, 0"); A(f"s_cbranch_scc1 {lbl}")
        rowloads(WA,8,[("s49",896*u) for u in range(4)]); rowloads(WB,8,[("s63",896*u) for u in range(4)])
        A(f"{lbl}:")
    A("v_lshlrev_b32 v4, 4, v4"); A("v_bfe_u32 v6, v0, 2, 1"); A("v_lshl_add_u32 v4, v6, 13, v4")
    A("v_lshl_add_u32 v4, v7, 14, v4"); A("v_bfe_u32 v6, v0, 3, 1"); A("v_lshl_add_u32 v4, v6, 16, v4")
    A("v_and_b32 v6, 7, v0"); A("v_lshlrev_b32 v6, 4, v6"); A("v_lshrrev_b32 v5, 3, v0"); A("v_lshl_add_u32 v6, v5, 11, v6")
    A("s_lshl_b32 s43, s60, 14"); A(f"s_add_u32 s43, s43, {INB1}"); A("s_lshl_b32 s52, s61, 7"); A("s_add_u32 s59, s43, s52")
    A(f"s_lshl_b32 s43, s93, 6"); A(f"s_add_u32 s55, s43, {INB2}"); A(f"s_add_u32 s48, s55, {16*8192}")
    if 'I' not in dbg: stamp(4)
    ldswait("L_wkick",L_KK,1)
    A(f"v_and_b32 v{T+2}, 15, v0"); A(f"v_lshlrev_b32 v{T+2}, 7, v{T+2}")
    A("s_lshl_b32 s42, s60, 11"); A(f"s_add_u32 s42, s42, {HDR}")
    A("s_mov_b32 s53, 0")
    A("L_cpoll:")
    A(f"buffer_load_dwordx2 v[{AA}:{AA+1}], v{T+2}, s[36:39], s42 offen sc1"); A("s_waitcnt vmcnt(0)")
    A(f"v_max_u32 v{T}, v{AA}, v{AA+1}"); A(f"v_cmp_eq_u32 vcc, -1, v{T}")
    A("s_cbranch_vccz L_cok")
    A("s_sleep 16")
    A("s_add_u32 s53, s53, 1"); A(f"s_cmp_ge_u32 s53, {SPIN}"); A("s_cbranch_scc1 L_end")
    A("s_branch L_cpoll")
    A("L_cok:")
    A("s_mov_b64 exec, 1"); A(f"v_mov_b32 v{TK}, {F2}"); A(f"buffer_atomic_add v{TK}, v1, s[36:39], s54 offen sc0"); A("s_mov_b64 exec, -1")
    dpp("v_max_f32",T,AA,AA,"row_ror:8")
    for ctl in ("row_ror:4","row_ror:2","row_ror:1"): dpp("v_max_f32",T,T,T,ctl)
    A(f"v_sub_f32 v{AA}, v{AA}, v{T}"); A(f"v_mul_f32 v{AA}, s40, v{AA}"); A(f"v_exp_f32 v{AA}, v{AA}")
    A(f"v_mul_f32 v{IL}, v{AA}, v{AA+1}")
    for ctl in ("row_ror:8","row_ror:4","row_ror:2","row_ror:1"): dpp("v_add_f32",IL,IL,IL,ctl)
    A(f"v_rcp_f32 v{IL}, v{IL}")
    A("s_mov_b64 exec, 1")
    A(f"ds_write_b32 v1, v{T} offset:{L_MH}")
    if TH2:
        A('; ---- tickets, one request ahead; while the pool is full a request takes two rounds')
        A("s_mov_b32 s52, 0"); A(f"s_mov_b32 s53, {F2}"); A("s_mov_b32 s84, 0")
        A("L_tloop:")
        for q in range(2):
            A("s_cmp_eq_u32 s84, 0"); A(f"s_cbranch_scc1 L_tnew{q}")
            A("s_mov_b32 s43, s84"); A("s_mov_b32 s84, 0"); A(f"v_mov_b32 v{T}, s43")
            A(f"s_branch L_tput{q}")
            A(f"L_tnew{q}:")
            A("s_waitcnt vmcnt(0)")
            A(f"v_readfirstlane_b32 s43, v{TK}"); A(f"v_mov_b32 v{T}, v{TK}")
            A("s_add_u32 s85, s43, 1"); A("s_cmp_eq_u32 s53, 2"); A("s_cselect_b32 s84, s85, 0")
            A(f"s_cmp_ge_u32 s43, {POOL}"); A(f"s_cbranch_scc1 L_tput{q}")
            A(f"s_cmp_lt_u32 s43, {TH2}"); A("s_cselect_b32 s53, 2, 1")
            A(f"v_mov_b32 v{TK}, s53"); A(f"buffer_atomic_add v{TK}, v1, s[36:39], s54 offen sc0")
            A(f"L_tput{q}:")
            A(f"ds_write_b32 v1, v{T} offset:{L_TK+4*q}")
            A("s_add_u32 s52, s52, 1"); A(f"s_cmp_gt_u32 s52, {TMAX}"); A(f"s_cselect_b32 s43, {POOL}, s43")
            A("s_waitcnt lgkmcnt(0)")
            A(f"s_cmp_ge_u32 s43, {POOL}"); A("s_cbranch_scc1 L_tdone")
            A("s_barrier")
    else:
        A('; ---- tickets, one ahead')
        A("s_mov_b32 s52, 0")
        A("L_tloop:")
        for q in range(2):
            A("s_waitcnt vmcnt(0)")
            A(f"ds_write_b32 v1, v{TK} offset:{L_TK+4*q}")
            A(f"v_readfirstlane_b32 s43, v{TK}")
            A("s_add_u32 s52, s52, 1"); A(f"s_cmp_gt_u32 s52, {TMAX}"); A(f"s_cselect_b32 s43, {POOL}, s43")
            A("s_waitcnt lgkmcnt(0)")
            A(f"s_cmp_ge_u32 s43, {POOL}"); A("s_cbranch_scc1 L_tdone")
            A(f"v_mov_b32 v{TK}, 1"); A(f"buffer_atomic_add v{TK}, v1, s[36:39], s54 offen sc0")
            A("s_barrier")
    A("s_branch L_tloop")
    A("L_tdone:")
    A("s_barrier")
    A("s_mov_b64 exec, -1")
    wol("L_wo")
    A("s_barrier")
    if 'I' not in dbg: stamp(5)
    O=AA
    for w in range(4): A(f"ds_read_b128 v[{O+4*w}:{O+4*w+3}], v{vL16} offset:{L_O+1024*w}")
    A("s_waitcnt lgkmcnt(2)")
    addv(O,O,O+4,4)
    A("s_waitcnt lgkmcnt(0)")
    addv(O+8,O+8,O+12,4); addv(O,O,O+8,4)
    for r in range(4): A(f"v_mul_f32 v{O+r}, v{O+r}, v{IL}")
    for r in range(4): A(f"v_min_u32 v{O+r}, -2, v{O+r}")
    A(f"buffer_store_dwordx4 v[{O}:{O+3}], v6, s[36:39], s59 offen sc1")
    if 'T' in dbg: stamp(1)
    A("s_mov_b32 s53, 0")
    A("s_bitcmp1_b32 s61, 0"); A("s_cbranch_scc1 L_upper")
    def poll(name,base,issue,nops,check,fin):
        n=len(base)
        for k in range(n-1): issue(base[k])
        A(f"{name}:")
        A("s_add_u32 s53, s53, 1"); A(f"s_cmp_ge_u32 s53, {SPIN}"); A("s_cbranch_scc1 L_end")
        for k in range(n):
            issue(base[(k+n-1)%n])
            check(base[k],nops*(n-1))
            if k<n-1: A(f"s_cbranch_vccz {name}_{k}")
            else: A(f"s_cbranch_vccnz {name}")
        for k in reversed(range(n)):
            if k<n-1: A(f"{name}_{k}:")
            fin(base[k])
            if k>0: A(f"s_branch {name}_done")
        A(f"{name}_done:")
    O=AA
    def iss1(b):
        for k in range(2): A(f"buffer_load_dwordx4 v[{b+4*k}:{b+4*k+3}], v{vL16}, s[36:39], s58 offen offset:{1024*k} sc1")
    def chk1(b,y):
        A(f"s_waitcnt vmcnt({y})"); anyneg([b+k for k in range(8)],T)
    def fin1(b):
        addv(O,b,b+4,4)
    poll("L_poll1",[AB,X],iss1,2,chk1,fin1)
    if 'I' not in dbg: stamp(6)
    merge4(O,O+1,O+2,O+3)
    dpp("v_add_f32",O,O,O,"row_ror:8")
    A(f"v_cvt_pk_bf16_f32 v{O}, v{O}, v{O}")
    if fast:
        def mf(k,cb):
            bb=(BB,BB2)[k>>2]+4*(k&3); W=WA+16*k
            A(f"v_mfma_f32_16x16x32_bf16 v[{DD+4*cb}:{DD+4*cb+3}], v[{W+4*cb}:{W+4*cb+3}], v[{bb}:{bb+3}], v[{DD+4*cb}:{DD+4*cb+3}]")
        def sel8(k):
            for t in range(4): dpp("v_and_b32",(BB,BB2)[k>>2]+4*(k&3)+t,O,M+t,f"row_newbcast:{k}")
        def out(half):
            d=DD+8*half
            for r in range(4): A(f"v_cndmask_b32 v{d+r}, v{d+r}, v{d+4+r}, s[50:51]")
            for r in range(4): A(f"v_min_u32 v{d+r}, -2, v{d+r}")
            if half: A("s_mov_b32 exec_hi, 0x00ff00ff")
            A(f"buffer_store_dwordx4 v[{d}:{d+3}], v4, s[36:39], {'s48' if half else 's55'} offen sc1")
        sel8(0)
        for k in range(8):
            if k<7: sel8(k+1)
            mf(k,0); mf(k,1)
        for k in range(8):
            mf(k,2); mf(k,3)
            if k==3: out(0)
        out(1)
    else:
        gemvB([(WA+16*k,O,f"row_newbcast:{k}") for k in range(8)])
        for half in range(2):
            d=DD+8*half
            for r in range(4): A(f"v_cndmask_b32 v{d+r}, v{d+r}, v{d+4+r}, s[50:51]")
            for r in range(4): A(f"v_min_u32 v{d+r}, -2, v{d+r}")
            if half: A("s_mov_b32 exec_hi, 0x00ff00ff")
            A(f"buffer_store_dwordx4 v[{d}:{d+3}], v4, s[36:39], {'s48' if half else 's55'} offen sc1")
    if 'T' in dbg: stamp(2)
    A("s_branch L_hend")
    A("L_upper:")
    A("s_cmp_lg_u32 s41, 2"); A("s_cbranch_scc1 L_hend")
    O=AA
    def iss2(b):
        for k in range(8): A(f"buffer_load_dwordx4 v[{b+4*k}:{b+4*k+3}], v{vL16}, s[36:39], {INS[k>>2]} offen offset:{1024*(k&3)} sc1")
    def chk2(b,y):
        for q in range(2):
            A(f"s_waitcnt vmcnt({y+4-4*q})")
            anyneg(([T] if q else [])+[b+16*q+k for k in range(16)],T)
    def fin2(b):
        addv(O,b,b+16,16)
    poll("L_poll2",[W1,W1+32],iss2,8,chk2,fin2)
    if 'T' in dbg: stamp(3)
    for st in (8,4): addv(O,O,O+st,st)
    merge4(O,O+1,O+2,O+3)
    for ctl in ("row_ror:4","row_ror:8"): dpp("v_add_f32",O,O,O,ctl)
    A(f"v_add_f32 v{O}, v{XC}, v{O}")
    A(f"v_cvt_pk_bf16_f32 v{O}, v{O}, v{O}")
    setexec(0x000f000f000f000f)
    A(f"buffer_store_short v{O}, v9, s[28:31], 0 offen")
    if zthr:
        stamp(7); A("s_waitcnt lgkmcnt(0)")
        A(f"s_sub_u32 s43, s78, s64"); A(f"s_cmp_lt_u32 s43, {zthr}"); A("s_cbranch_scc1 L_hend")
        A("s_mov_b32 s53, 30"); A("L_z:"); A("s_sleep 127"); A("s_sub_u32 s53, s53, 1"); A("s_cmp_lg_u32 s53, 0"); A("s_cbranch_scc1 L_z")
    A("L_hend:")
    stamp(7)
    write_stamps()
    A("L_end:")
    A("s_endpgm")
    A("L_qself:")
    A("s_lshl_b32 s52, s60, 9"); A(f"v_lshrrev_b32 v{T+8}, 1, v4")
    A("s_mov_b32 s53, 0")
    A("L_qs:")
    A("s_mov_b32 s43, s52")
    for u in range(14):
        A(f"buffer_load_dwordx4 v[{W1+4*u}:{W1+4*u+3}], v2, s[32:35], s43 offen")
        if u<13: A(f"s_add_u32 s43, s43, {8192*US}")
    A("s_waitcnt vmcnt(0)")
    qslice(False)
    setexec(0x0003000300030003)
    A(f"ds_write_b32 v{T+8}, v{T}")
    A("s_mov_b64 exec, -1")
    A(f"v_add_u32 v{T+8}, 32, v{T+8}")
    A("s_add_u32 s52, s52, 32"); A("s_add_u32 s53, s53, 1"); A("s_cmp_lt_u32 s53, 16"); A("s_cbranch_scc1 L_qs")
    A("s_cmp_lg_u32 s61, 0"); A("s_cbranch_scc1 L_qok")
    A("s_mov_b32 s87, 1"); A(f"v_mov_b32 v{T}, 64"); A(f"v_mov_b32 v{T+1}, 1")
    A("s_mov_b64 exec, 1")
    A(f"buffer_store_dword v{T+1}, v{T}, s[44:47], 0 offen sc1")
    A("s_mov_b64 exec, -1")
    A("s_branch L_qok")
    A("L_help:")
    A("s_add_u32 s53, s53, 1"); A(f"s_cmp_ge_u32 s53, {SPIN}"); A("s_cbranch_scc1 L_end")
    A(f"v_readlane_b32 s43, v{T}, 16")
    A("s_cmp_eq_u32 s43, 0"); A("s_cbranch_scc1 L_help2")
    A("s_bitcmp1_b32 s87, 1"); A("s_cbranch_scc1 L_help1")
    A("s_or_b32 s87, s87, 2")
    A("s_lshr_b32 s43, s62, 4"); A("s_lshl_b32 s43, s43, 2"); A(f"v_mov_b32 v{T+3}, s43"); A(f"v_mov_b32 v{T+4}, 1")
    A("s_mov_b64 exec, 1")
    A(f"buffer_atomic_add v{T+4}, v{T+3}, s[44:47], 0 offen offset:128")
    A("s_mov_b64 exec, -1")
    A("L_help1:")
    A("s_bitcmp1_b32 s87, 0"); A("s_cbranch_scc0 L_help2")
    A("s_add_u32 s52, s60, 32"); A(f"v_readlane_b32 s43, v{T}, s52")
    A("s_cmp_lt_u32 s43, 16"); A("s_cbranch_scc1 L_help2")
    A("s_lshl_b32 s43, s60, 2"); A(f"v_mov_b32 v{T+3}, s43"); A(f"v_mov_b32 v{T+4}, 1")
    A("s_mov_b64 exec, 1")
    A(f"buffer_store_dword v{T+4}, v{T+3}, s[44:47], 0 offen sc1")
    A("s_mov_b64 exec, -1")
    A("L_help2:")
    A("s_sleep 32")
    A("s_branch L_apoll")
    A(f""".section .rodata,"a"
.p2align 6
.amdhsa_kernel {NAME}_kernel
  .amdhsa_next_free_vgpr 256
  .amdhsa_next_free_sgpr 96
  .amdhsa_accum_offset 256
  .amdhsa_group_segment_fixed_size 0
  .amdhsa_kernarg_size 96
  .amdhsa_user_sgpr_count 2
  .amdhsa_user_sgpr_kernarg_segment_ptr 1
  .amdhsa_system_sgpr_workgroup_id_x 1
.end_amdhsa_kernel""")
    return "\n".join(l.rstrip() for l in pad(L))+"\n"

if __name__=='__main__':
    kw={}
    for t in sys.argv[2:]:
        k,v=t.split('=')
        try: v=int(v)
        except ValueError: v=v.replace('_',' ')
        kw[k]=v
    open(sys.argv[1],'w').write(gen(**kw))
```
